```python
import torch

def _softmax(x, axis=-1):
    return torch.softmax(x, dim=axis)

def _gelu(x):
    return torch.nn.functional.gelu(x, approximate='tanh')

def _silu(x):
    return torch.nn.functional.silu(x)

def _sigmoid(x):
    return torch.sigmoid(x)

def _layernorm(x, axis=-1, eps=1e-05):
    m = x.mean(dim=axis, keepdim=True)
    v = x.var(dim=axis, keepdim=True, unbiased=False)
    return (x - m) / torch.sqrt(v + eps)

def _scatter_add(tgt, idx, src, axis=0):
    return tgt.clone().index_add_(axis, idx, src)

def _segment_sum(src, seg, n):
    out = torch.zeros((n,) + src.shape[1:], dtype=src.dtype)
    return out.index_add_(0, seg, src)

def _pad(x, pw):
    flat = tuple((v for pair in reversed(pw) for v in pair))
    return torch.nn.functional.pad(x, flat)
kernel_name = 'recurrent_scan__memory_aug_recurrent_mem_tr__swiglu_ffn__prompt'

def setup_inputs():

    _w = lambda a: (lambda t: t.to(torch.bfloat16) if t.is_floating_point() else t)(torch.as_tensor(a))

    def _A_setup():
        B, S, Dm = (1, 2048, 448)
        H, Dh = (16, 256)
        M, seg = (8, 32)
        seg = min(seg, S)
        S = S // seg * seg
        return {'x': _w((lambda *s: torch.randn(*s, dtype=torch.bfloat16) * 0.05)(B, S, Dm)), 'mem0': _w((lambda *s: torch.randn(*s, dtype=torch.bfloat16) * 0.2)(B, M, Dm)), 'Wq': _w((lambda *s: torch.randn(*s, dtype=torch.bfloat16) * 1.6)(Dm, H, Dh) * Dm ** (-0.5)), 'Wk': _w((lambda *s: torch.randn(*s, dtype=torch.bfloat16) * 1.6)(Dm, H, Dh) * Dm ** (-0.5)), 'Wv': _w((lambda *s: torch.randn(*s, dtype=torch.bfloat16) * 0.2)(Dm, H, Dh) * Dm ** (-0.5)), 'Wo': _w((lambda *s: torch.randn(*s, dtype=torch.bfloat16) * 0.2)(H, Dh, Dm) * (H * Dh) ** (-0.5)), 'seg_len': seg}
    _A_in = _A_setup()

    def _B_setup():
        B, S, D, F = (1, 2048, 448, 1792)
        return {'x': _w((lambda *s: torch.randn(*s, dtype=torch.bfloat16) * 0.05)(B, S, D)), 'w_gate': _w((lambda *s: torch.randn(*s, dtype=torch.bfloat16) * 0.1)(D, F)), 'w_up': _w((lambda *s: torch.randn(*s, dtype=torch.bfloat16) * 0.1)(D, F)), 'w_down': _w((lambda *s: torch.randn(*s, dtype=torch.bfloat16) * 0.1)(F, D))}
    _B_in = _B_setup()
    return {'A_x': _A_in['x'], 'A_mem0': _A_in['mem0'], 'A_Wq': _A_in['Wq'], 'A_Wk': _A_in['Wk'], 'A_Wv': _A_in['Wv'], 'A_Wo': _A_in['Wo'], 'A_seg_len': _A_in['seg_len'], 'B_x': _B_in['x'], 'B_w_gate': _B_in['w_gate'], 'B_w_up': _B_in['w_up'], 'B_w_down': _B_in['w_down']}

def reference(A_x, A_mem0, A_Wq, A_Wk, A_Wv, A_Wo, A_seg_len, B_x, B_w_gate, B_w_up, B_w_down):

    def _A_ref(x, mem0, Wq, Wk, Wv, Wo, seg_len):
        B, S, Dm = x.shape
        H, Dh = (Wq.shape[1], Wq.shape[2])
        M = mem0.shape[1]
        scale = Dh ** (-0.5)
        n_seg = S // seg_len
        L = M + seg_len
        idx = torch.arange(L)
        mask = (idx[:, None] < M) | (idx[:, None] >= idx[None, :])
        mem = mem0
        outs = []
        for s in range(n_seg):
            xs = x[:, s * seg_len:(s + 1) * seg_len, :].clone()
            h = torch.concatenate([mem, xs], axis=1)
            q = torch.einsum('btd,dhe->bhte', h, Wq)
            k = torch.einsum('btd,dhe->bhte', h, Wk)
            v = torch.einsum('btd,dhe->bhte', h, Wv)
            scores = torch.einsum('bhqe,bhke->bhqk', q, k) * scale
            scores = torch.where(mask[None, None], scores, -1000000000.0)
            p = _softmax(scores, axis=-1)
            o = torch.einsum('bhqk,bhke->bhqe', p, v)
            o = torch.einsum('bhte,hed->btd', o, Wo)
            mem = o[:, :M, :].clone()
            outs.append(o[:, M:, :])
        return torch.concatenate(outs, axis=1)

    def _B_ref(x, w_gate, w_up, w_down):
        g = _silu(x @ w_gate)
        u = x @ w_up
        return g * u @ w_down
    x = A_x
    xn = _layernorm(x, axis=-1)
    s = _A_ref(xn, A_mem0, A_Wq, A_Wk, A_Wv, A_Wo, A_seg_len)
    g = _silu(_B_ref(xn, B_w_gate, B_w_up, B_w_down))
    return x + s * g
```

```python
import re

REG_RE = re.compile(r'^(-|\|)?(abs\()?([vas])(\d+|\[(\d+):(\d+)\])\)?\|?$')


def regs_of(tok):
    tok = tok.strip()
    if tok in ('vcc', 'vcc_lo', 'vcc_hi'):
        return [('x', 'vcc')]
    if tok in ('exec', 'exec_lo', 'exec_hi'):
        return [('x', 'exec')]
    if tok == 'm0':
        return [('x', 'm0')]
    m = REG_RE.match(tok)
    if not m:
        return []
    k = m.group(3)
    if m.group(5) is not None:
        return [(k, i) for i in range(int(m.group(5)), int(m.group(6)) + 1)]
    return [(k, int(m.group(4)))]


TRANS = ('v_exp_f32', 'v_log_f32', 'v_rcp_f32', 'v_rsq_f32', 'v_sqrt_f32', 'v_sin_f32', 'v_cos_f32',
         'v_rcp_iflag_f32')


class Ins:
    __slots__ = ('text', 'op', 'ops', 'mods', 'defs', 'uses', 'kind', 'label', 'target', 'passes', 'srcc',
                 'ab', 'dpp', 'stdata', 'states', 'lanesel')

    def __init__(self, text):
        self.text = text
        self.label = None
        self.target = None
        self.passes = 0
        self.srcc = []
        self.ab = []
        self.dpp = False
        self.stdata = []
        self.defs = []
        self.uses = []
        self.lanesel = []
        self.states = 1
        t = text.split(';')[0].strip()
        if t.endswith(':'):
            self.kind = 'label'
            self.label = t[:-1]
            self.op = ''
            self.states = 0
            return
        if t == '' or t.startswith('.'):
            self.kind = 'dir'
            self.op = ''
            self.states = 0
            return
        parts = t.split(None, 1)
        op = parts[0]
        self.op = op
        rest = parts[1] if len(parts) > 1 else ''
        toks, depth, cur = [], 0, ''
        for ch in rest:
            if ch in '[(':
                depth += 1
            if ch in '])':
                depth -= 1
            if ch == ',' and depth == 0:
                toks.append(cur.strip())
                cur = ''
            else:
                cur += ch
        if cur.strip():
            toks.append(cur.strip())
        mods = ''
        if toks:
            last = toks[-1].split(None, 1)
            toks[-1] = last[0]
            if len(last) > 1:
                mods = last[1]
        self.ops = toks
        self.mods = mods
        R = [regs_of(x) for x in toks]
        flat = lambda L: [r for x in L for r in x]
        if op == 's_nop':
            self.kind = 'nop'
            self.states = int(toks[0], 0) + 1
        elif op in ('s_branch',) or op.startswith('s_cbranch'):
            self.kind = 'branch'
            self.target = toks[0]
            if 'vcc' in op:
                self.uses = [('x', 'vcc')]
        elif op == 's_endpgm':
            self.kind = 'end'
        elif op.startswith('v_mfma') or op.startswith('v_smfmac'):
            self.kind = 'mfma'
            self.defs = R[0]
            if op.startswith('v_smfmac'):
                self.srcc = R[0]
                self.ab = R[1] + R[2] + R[3]
            else:
                self.srcc = R[3]
                self.ab = R[1] + R[2]
            self.uses = self.ab + self.srcc
            if '32x32x16' in op or '32x32x32' in op:
                self.passes = 8
            elif '16x16x32' in op or '16x16x64' in op:
                self.passes = 4
            else:
                raise ValueError('unknown mfma ' + op)
        elif op.startswith('ds_'):
            self.kind = 'ds'
            if op.startswith('ds_read') or op.startswith('ds_bpermute') or op.startswith('ds_swizzle') or op.startswith('ds_permute'):
                self.defs = R[0]
                self.uses = flat(R[1:])
            else:
                self.uses = flat(R)
        elif op.startswith('global_') or op.startswith('buffer_'):
            self.kind = 'vmem'
            is_lds = op.startswith('global_load_lds') or re.search(r'\blds\b', mods or '') is not None
            if 'store' in op:
                self.uses = flat(R)
                data = R[1] if op.startswith('global_') else R[0]
                if len(data) >= 3:
                    self.stdata = data
            elif 'atomic' in op:
                if re.search(r'\bsc0\b', mods):
                    if op.startswith('global_'):
                        self.defs = R[0]
                        self.uses = flat(R[1:])
                    else:
                        self.defs = R[0]
                        self.uses = flat(R)
                else:
                    self.uses = flat(R)
            elif op in ('buffer_inv', 'buffer_wbl2'):
                pass
            elif is_lds:
                self.uses = flat(R) + [('x', 'm0')]
            else:
                self.defs = R[0]
                self.uses = flat(R[1:])
                if 'd16' in op:
                    self.uses += R[0]
        elif op.startswith('v_'):
            self.kind = 'valu'
            base = op.replace('_e32', '').replace('_e64', '').replace('_dpp', '').replace('_sdwa', '')
            self.dpp = op.endswith('_dpp') or 'row_' in mods or 'quad_perm' in mods
            if base.startswith('v_cmp'):
                self.defs = R[0]
                self.uses = flat(R[1:])
                if base.startswith('v_cmpx'):
                    self.defs = self.defs + [('x', 'exec')]
            elif base in ('v_permlane16_swap_b32', 'v_permlane32_swap_b32', 'v_swap_b32'):
                self.defs = R[0] + R[1]
                self.uses = R[0] + R[1]
            elif base in ('v_add_co_u32', 'v_sub_co_u32', 'v_subrev_co_u32', 'v_addc_co_u32', 'v_subb_co_u32',
                          'v_mad_u64_u32', 'v_div_scale_f32'):
                self.defs = R[0] + R[1]
                self.uses = flat(R[2:])
            elif base in ('v_readlane_b32', 'v_writelane_b32'):
                self.defs = R[0]
                self.uses = flat(R[1:])
                self.lanesel = R[2]
                if base == 'v_writelane_b32':
                    self.uses += R[0]
            else:
                self.defs = R[0]
                self.uses = flat(R[1:])
                if base in ('v_fmac_f32', 'v_dot2c_f32_bf16', 'v_pk_fmac_f16') or self.dpp:
                    self.uses = self.uses + R[0]
                if base == 'v_cndmask_b32' and len(toks) == 3:
                    self.uses = self.uses + [('x', 'vcc')]
            self.op = base
        elif op.startswith('s_'):
            if op.startswith('s_load') or op.startswith('s_buffer_load') or op in ('s_memtime', 's_memrealtime'):
                self.kind = 'smem'
                self.defs = R[0]
                self.uses = flat(R[1:])
            else:
                self.kind = 'salu'
                if op.startswith('s_cmp') or op in ('s_waitcnt', 's_barrier', 's_sleep', 's_setprio', 's_bitcmp0_b32', 's_bitcmp1_b32', 's_setreg_b32', 's_setreg_imm32_b32'):
                    self.uses = flat(R)
                else:
                    self.defs = R[0]
                    self.uses = flat(R[1:])
                    if 'saveexec' in op:
                        self.defs = self.defs + [('x', 'exec')]
        else:
            raise ValueError('unknown instruction: ' + text)


BIG = 64


class State:
    def __init__(self):
        self.valu_w = {}
        self.trans_w = {}
        self.dot_w = {}
        self.vs_w = {}
        self.mf_w = {}
        self.mf_c = {}
        self.m0_w = BIG
        self.st_d = {}
        self.vexec = BIG

    def copy(self):
        s = State()
        s.valu_w = dict(self.valu_w)
        s.trans_w = dict(self.trans_w)
        s.dot_w = dict(self.dot_w)
        s.vs_w = dict(self.vs_w)
        s.mf_w = dict(self.mf_w)
        s.mf_c = dict(self.mf_c)
        s.m0_w = self.m0_w
        s.st_d = dict(self.st_d)
        s.vexec = self.vexec
        return s

    def key(self):
        return (tuple(sorted(self.valu_w.items())), tuple(sorted(self.trans_w.items())),
                tuple(sorted(self.dot_w.items())), tuple(sorted(self.vs_w.items())),
                tuple(sorted(self.mf_w.items())), tuple(sorted(self.mf_c.items())), self.m0_w,
                tuple(sorted(self.st_d.items())), self.vexec)

    def merge(self, o):
        def mm(a, b):
            for k, v in b.items():
                if k not in a or v < a[k]:
                    a[k] = v
        mm(self.valu_w, o.valu_w)
        mm(self.trans_w, o.trans_w)
        mm(self.vs_w, o.vs_w)
        mm(self.st_d, o.st_d)
        for k, v in o.dot_w.items():
            if k not in self.dot_w:
                self.dot_w[k] = v
            else:
                a = self.dot_w[k]
                self.dot_w[k] = (min(a[0], v[0]), a[1] if a[1] == v[1] else '?')
        for k, v in o.mf_w.items():
            if k not in self.mf_w:
                self.mf_w[k] = v
            else:
                a = self.mf_w[k]
                ra, rb = a[1] + 4 - a[0], v[1] + 4 - v[0]
                w = a if ra >= rb else v
                if a[2] != v[2] or a[1] != v[1]:
                    w = (w[0], w[1], ())
                self.mf_w[k] = w
        for k, v in o.mf_c.items():
            if k not in self.mf_c or (v[1] - v[0]) > (self.mf_c[k][1] - self.mf_c[k][0]):
                self.mf_c[k] = v
        self.m0_w = min(self.m0_w, o.m0_w)
        self.vexec = min(self.vexec, o.vexec)

    def advance(self, n):
        if n == 0:
            return
        for d, lim in ((self.valu_w, 2), (self.trans_w, 1), (self.vs_w, 5), (self.st_d, 2)):
            for k in list(d):
                d[k] += n
                if d[k] >= lim:
                    del d[k]
        for k in list(self.dot_w):
            a, o = self.dot_w[k]
            if a + n >= 3:
                del self.dot_w[k]
            else:
                self.dot_w[k] = (a + n, o)
        for k in list(self.mf_w):
            a, p, d = self.mf_w[k]
            if a + n >= p + 4:
                del self.mf_w[k]
            else:
                self.mf_w[k] = (a + n, p, d)
        for k in list(self.mf_c):
            a, p = self.mf_c[k]
            if a + n >= p - 1:
                del self.mf_c[k]
            else:
                self.mf_c[k] = (a + n, p)
        self.m0_w = min(BIG, self.m0_w + n)
        self.vexec = min(BIG, self.vexec + n)

    def need(self, I):
        n = 0

        def req(age, want):
            nonlocal n
            if want - age > n:
                n = want - age
        k = I.kind
        isv = lambda r: r[0] in 'va'
        if k == 'mfma':
            for r in I.uses:
                if r in self.valu_w:
                    req(self.valu_w[r], 2)
                if r in self.dot_w:
                    req(self.dot_w[r][0], 3)
            for r in I.ab:
                if r in self.mf_w:
                    a, p, d = self.mf_w[r]
                    req(a, p + 4)
            for r in I.srcc:
                if r in self.mf_w:
                    a, p, d = self.mf_w[r]
                    if d == tuple(I.srcc) and p == I.passes:
                        pass
                    else:
                        req(a, p + 2)
            for r in I.defs:
                if r in self.mf_w and r not in I.srcc:
                    a, p, d = self.mf_w[r]
                    req(a, p + 2)
            req(self.vexec, 4)
        elif k == 'valu':
            for r in I.uses + I.defs:
                if r in self.mf_w:
                    a, p, d = self.mf_w[r]
                    req(a, p + 4)
                if r in self.dot_w:
                    a, o = self.dot_w[r]
                    req(a, 3)
            for r in I.defs:
                if r in self.mf_c:
                    a, p = self.mf_c[r]
                    req(a, p - 1)
                if r in self.st_d:
                    req(self.st_d[r], 2)
            for r in I.uses:
                if r in self.trans_w and I.op not in TRANS:
                    req(self.trans_w[r], 1)
                if r in self.valu_w:
                    if I.op in ('v_readlane_b32', 'v_readfirstlane_b32'):
                        req(self.valu_w[r], 1)
                    if I.op.startswith('v_permlane') or I.dpp:
                        req(self.valu_w[r], 2)
                if r in self.vs_w:
                    req(self.vs_w[r], 4 if r in I.lanesel else 2)
            if I.dpp:
                req(self.vexec, 5)
            if I.op in ('v_readlane_b32', 'v_readfirstlane_b32', 'v_writelane_b32') or I.op.startswith('v_permlane'):
                req(self.vexec, 4)
        elif k in ('vmem', 'ds'):
            for r in I.uses + I.defs:
                if r in self.mf_w:
                    a, p, d = self.mf_w[r]
                    req(a, p + 4)
                if r in self.dot_w:
                    req(self.dot_w[r][0], 3)
            for r in I.uses:
                if r in self.vs_w and k == 'vmem':
                    req(self.vs_w[r], 5)
                if r == ('x', 'm0'):
                    req(self.m0_w, 1)
                if r in self.trans_w:
                    req(self.trans_w[r], 1)
            for r in I.defs:
                if r in self.st_d:
                    req(self.st_d[r], 1)
                if r in self.mf_c:
                    a, p = self.mf_c[r]
                    req(a, p - 1)
        elif k in ('salu', 'smem', 'branch'):
            for r in I.uses:
                if r in self.vs_w and k == 'smem':
                    req(self.vs_w[r], 5)
        return n

    def apply(self, I):
        self.advance(I.states)
        k = I.kind
        if k == 'valu':
            for r in I.defs:
                if r[0] in 'va':
                    self.valu_w[r] = 0
                    self.mf_w.pop(r, None)
                    if I.op in TRANS:
                        self.trans_w[r] = 0
                    else:
                        self.trans_w.pop(r, None)
                    if I.op.startswith('v_dot'):
                        self.dot_w[r] = (0, I.op)
                    else:
                        self.dot_w.pop(r, None)
                elif r == ('x', 'exec'):
                    self.vexec = 0
                else:
                    self.vs_w[r] = 0
        elif k == 'mfma':
            for r in I.defs:
                self.mf_w[r] = (0, I.passes, tuple(I.defs))
            for r in I.srcc:
                self.mf_c[r] = (0, I.passes)
        elif k == 'salu':
            for r in I.defs:
                if r == ('x', 'm0'):
                    self.m0_w = 0
                self.vs_w.pop(r, None)
        elif k == 'vmem':
            for r in I.stdata:
                self.st_d[r] = 0


def hazard_pass(ins):
    labels = {I.label: i for i, I in enumerate(ins) if I.kind == 'label'}
    pad = [0] * len(ins)
    for _outer in range(50):
        instate = {}
        work = [(0, State())]
        entry_labels = [i for i, I in enumerate(ins) if I.kind == 'label' and I.label.endswith('_kernel')]
        work = [(i, State()) for i in entry_labels] or work
        changed = False
        seen = {}
        while work:
            i, st = work.pop()
            while i < len(ins):
                I = ins[i]
                if I.kind == 'label':
                    if i in seen:
                        old = seen[i]
                        k0 = old.key()
                        old.merge(st)
                        if old.key() == k0:
                            break
                        st = old.copy()
                    else:
                        seen[i] = st.copy()
                    i += 1
                    continue
                if I.kind == 'dir':
                    i += 1
                    continue
                st.advance(pad[i])
                n = st.need(I)
                if n > 0:
                    pad[i] += n
                    st.advance(n)
                    changed = True
                st.apply(I)
                if I.kind == 'end':
                    break
                if I.kind == 'branch':
                    if I.target not in labels:
                        raise ValueError('unknown label ' + I.target)
                    work.append((labels[I.target], st.copy()))
                    if I.op == 's_branch':
                        break
                i += 1
        if not changed:
            break
    out = []
    for i, I in enumerate(ins):
        n = pad[i]
        while n > 0:
            m = min(n, 16)
            out.append('    s_nop %d' % (m - 1))
            n -= m
        out.append(I.text if I.kind in ('label', 'dir') else '    ' + I.text)
    return out, sum(1 for p in pad if p)


class Asm:
    def __init__(self):
        self.ins = []
        self.uid = 0

    def __call__(self, text):
        for line in text.split('\n'):
            line = line.strip()
            if line:
                self.ins.append(Ins(line))

    def label(self, name):
        self.ins.append(Ins(name + ':'))

    def newlabel(self, base='L'):
        self.uid += 1
        return '%s_%d' % (base, self.uid)

    def text(self):
        lines, n = hazard_pass(self.ins)
        return '\n'.join(lines) + '\n'


def v(n, c=1):
    return 'v%d' % n if c == 1 else 'v[%d:%d]' % (n, n + c - 1)


def a(n, c=1):
    return 'a%d' % n if c == 1 else 'a[%d:%d]' % (n, n + c - 1)


def s(n, c=1):
    return 's%d' % n if c == 1 else 's[%d:%d]' % (n, n + c - 1)


def r(n, c=1):
    if n < 256:
        assert n + c <= 256
        return v(n, c)
    return a(n - 256, c)
```

```python
from common import *
from workers import WS, abort, wait_counter, SPIN_LIMIT

MB, TB, RB, VXL, XSL, WL = 0, 8192, 12288, 16384, 32768, 49152
M0, TACC, UACC, H0, UO, SACC, PX, PM = 16, 44, 60, 76, 104, 112, 96, 116
SP = 76
SV = [44 + i for i in range(16)] + [112, 113, 114, 115]
TILES = [[0, 1, 2, 3], [4, 5, 6, 7], [8, 9, 10], [11, 12, 13]]
OWN = [[0, 1], [2, 3], [4, 5], [6]]
POLL_LIMIT = 2000000
S_STEP, S_MPOLL, S_SPUB, S_SPOLL, S_MPUB, S_MCLR, S_SCLR, S_VX, S_XS, S_UX, S_MX, S_CV = 64, 65, 66, 67, 68, 69, 70, 71, 72, 73, 74, 75
S_ONES, S_GUARD, S_PM, S_PU, S_H, S_P, S_C, S_CNT = 76, 77, 78, 79, 80, 81, 82, 83
S_T0 = 84

def WA(tl, k): return a((tl * 7 + k) * 8, 8)
def WBreg(w, hb, k):
    if hb == 0:
        return ('a', 224 + 8 * k) if k < 4 else ('v', 120 + 8 * (k - 4))
    if hb == 1: return ('v', 144 + 8 * k)
    if hb == 2: return ('v', 200 + 8 * k)
    return ('a', 168 + 8 * k) if w >= 2 else None
def rr(t, off=0, n=8):
    return (a if t[0] == 'a' else v)(t[1] + off, n)
def M(k): return v(M0 + 4 * k, 4)
def smf(A, d, aop, bop):
    A('v_smfmac_f32_16x16x64_bf16 %s, %s, %s, v5' % (v(d, 4), aop, bop))

def setup(A):
    A('s_lshr_b32 s%d, s7, 1' % S_H)
    A('s_and_b32 s%d, s7, 1' % S_P)
    A('s_mov_b32 s%d, s7' % S_C)
    A('s_mov_b32 s%d, 0x3f803f80' % S_ONES)
    A('s_mov_b32 s%d, 0xfffefffe' % S_GUARD)
    sk = A.newlabel('rv')
    A('s_cmp_lg_u32 s6, 0')
    A('s_cbranch_scc1 %s' % sk)
    A('s_cmp_eq_u32 s5, 0')
    A('s_cselect_b32 s8, 1, 0x10001')
    A('s_mov_b32 s9, %d' % (L.CNT + L.C_RDV * 128))
    A('s_mov_b64 exec, 1')
    A('v_mov_b32 v13, s8')
    A('buffer_atomic_add v13, off, %s, s9 sc1' % WS)
    A('s_mov_b64 exec, -1')
    A.label(sk)
    A('v_bfe_u32 v5, v3, 1, 1')
    A('v_mul_u32_u24 v5, 0xaaaa, v5')
    A('v_add_u32 v5, 0x4444, v5')
    A('v_and_b32 v6, 7, v3')
    A('v_lshlrev_b32 v6, 5, v6')
    A('v_lshl_add_u32 v6, v4, 3, v6')
    A('v_lshrrev_b32 v7, 3, v3')
    A('v_lshl_add_u32 v6, v7, 2, v6')
    A('v_add_u32 v6, %d, v6' % TB)
    A('v_lshrrev_b32 v7, 2, v3')
    A('v_lshlrev_b32 v7, 5, v7')
    A('v_lshl_add_u32 v7, v4, 8, v7')
    A('v_and_b32 v8, 3, v3')
    A('v_lshl_add_u32 v7, v8, 3, v7')
    A('v_add_u32 v7, %d, v7' % TB)
    A('v_bfe_u32 v8, v3, 1, 2')
    A('v_lshlrev_b32 v8, 6, v8')
    A('v_and_b32 v9, 1, v3')
    A('v_lshl_add_u32 v8, v9, 4, v8')
    A('v_lshrrev_b32 v9, 1, v4')
    A('v_lshl_add_u32 v8, v9, 8, v8')
    A('v_and_b32 v9, 1, v4')
    A('v_lshl_add_u32 v8, v9, 3, v8')
    A('s_mul_i32 s8, s%d, %d' % (S_P, 14 * 256))
    A('v_add_u32 v8, s8, v8')
    A('v_lshlrev_b32 v11, 7, v4')
    A('v_lshl_add_u32 v11, v3, 2, v11')
    A('s_lshl_b32 s8, s6, 9')
    A('s_add_u32 s8, s8, %d' % RB)
    A('v_add_u32 v11, s8, v11')
    A('v_lshlrev_b32 v12, 3, v0')
    A('v_add_u32 v12, %d, v12' % RB)
    A('v_lshrrev_b32 v13, 4, v0')
    A('v_lshlrev_b32 v13, 6, v13')
    A('v_bfe_u32 v14, v0, 2, 1')
    A('v_lshl_add_u32 v13, v14, 5, v13')
    A('v_bfe_u32 v14, v0, 3, 1')
    A('v_lshl_add_u32 v13, v14, 4, v13')
    A('v_and_b32 v14, 3, v0')
    A('v_lshl_add_u32 v13, v14, 2, v13')
    A('v_mov_b32 v16, 0')
    A('v_mov_b32 v17, 0')
    A('v_lshlrev_b32 v18, 3, v0')
    A('ds_write_b64 v18, v[16:17] offset:%d' % (TB + 14 * 256))

def wave_setup(A, w, brole):
    if w >= 2:
        b = w - 2
        A('v_bfe_u32 v9, v3, 2, 1')
        A('v_lshlrev_b32 v9, 10, v9')
        A('v_lshrrev_b32 v16, 3, v3')
        A('v_lshl_add_u32 v9, v16, 8, v9')
        A('v_lshl_add_u32 v9, v4, 6, v9')
        A('v_and_b32 v16, 3, v3')
        A('v_lshl_add_u32 v9, v16, 2, v9')
        A('v_add_u32 v9, %d, v9' % (b * 2048))
    elif w == 1:
        A('v_bfe_u32 v9, v3, 2, 1')
        A('v_lshlrev_b32 v9, 8, v9')
        A('v_lshl_add_u32 v9, v4, 6, v9')
        A('v_and_b32 v16, 3, v3')
        A('v_lshl_add_u32 v9, v16, 2, v9')
        A('v_add_u32 v9, 4096, v9')
        A('v_lshrrev_b32 v16, 3, v3')
        A('v_lshlrev_b32 v16, 30, v16')
        A('v_add_u32 v9, v16, v9')
    A('v_add_u32 v10, 4096, v1')
    A('s_lshr_b32 s8, s%d, 2' % S_H)
    A('s_mul_i32 s12, s8, 5120')
    A('s_bfe_u32 s8, s%d, 0x10001' % S_H)
    A('s_lshl_b32 s8, s8, 9')
    A('s_add_u32 s12, s12, s8')
    A('s_and_b32 s8, s%d, 1' % S_H)
    A('s_lshl_b32 s8, s8, 5')
    A('s_add_u32 s12, s12, s8')
    A('s_lshl_b32 s8, s%d, 1' % S_P)
    A('s_add_u32 s12, s12, s8')
    A('s_add_u32 s12, s12, %d' % L.SR)
    A('s_mul_i32 s13, s7, 640')
    A('s_add_u32 s13, s13, %d' % (L.SR + w * 256))
    A('s_lshl_b32 s14, s%d, 8' % S_C)
    A('s_add_u32 s14, s14, %d' % L.MEMR)
    A('s_mul_i32 s8, s%d, 28' % S_H)
    A('s_mul_i32 s9, s%d, 14' % S_P)
    A('s_add_u32 s8, s8, s9')
    A('s_add_u32 s8, s8, %d' % TILES[w][0])
    A('s_mul_i32 s8, s8, 14336')
    A('s_add_u32 s8, s8, %d' % L.AF)
    n = 0
    for tl in range(len(TILES[w])):
        for pi in range(14):
            A('buffer_load_dwordx4 %s, v1, %s, s8 offen offset:%d' % (a((tl * 7) * 8 + pi * 4, 4), WS, (n % 4) * 1024))
            n += 1
            if n % 4 == 0:
                A('s_add_u32 s8, s8, 4096')
    if brole:
        A('s_lshl_b32 s8, s%d, 4' % S_C)
        A('s_add_u32 s8, s8, %d' % (4 * w))
        A('s_mul_i32 s8, s8, 14336')
        A('s_add_u32 s8, s8, %d' % L.BF)
        n = 0
        for hb in range(4):
            A('s_waitcnt vmcnt(40)')
            for pi in range(14):
                t = WBreg(w, hb, pi // 2)
                if t is None:
                    A('s_mov_b32 m0, %d' % (WL + w * 14336 + pi * 1024 - (n % 4) * 1024))
                    A('buffer_load_dwordx4 v1, %s, s8 offen offset:%d lds' % (WS, (n % 4) * 1024))
                else:
                    A('buffer_load_dwordx4 %s, v1, %s, s8 offen offset:%d' % (rr(t, 4 * (pi % 2), 4), WS, (n % 4) * 1024))
                n += 1
                if n % 4 == 0:
                    A('s_add_u32 s8, s8, 4096')
    if w < 2:
        A('v_add_u32 v%d, %d, v1' % ([8, 12][w], WL + w * 14336))
    A('v_mov_b32 v3, -1')
    for q in (104, 105, 106, 107, 108, 109, 110, 111, 117, 119):
        A('v_mov_b32 v%d, 0' % q)
    A('v_lshlrev_b32 v4, 2, v0')
    A('s_mul_i32 s%d, s%d, %d' % (S_XS, S_P, 7 * 1024))
    A('s_add_u32 s%d, s%d, %d' % (S_XS, S_XS, L.XN + (max(w - 2, 0)) * 14336))
    A('s_lshl_b32 s%d, s%d, 14' % (S_VX, S_C))
    A('s_add_u32 s%d, s%d, %d' % (S_VX, S_VX, L.VX + w * 4096))
    A('s_mov_b32 s%d, %d' % (S_CV, L.CNT + L.C_V * 128))
    A('s_mov_b32 s%d, 0' % S_STEP)

def xs_dma(A, w):
    if w < 2:
        return
    for f in range(7):
        if f == 4:
            A('s_add_u32 s8, s%d, 4096' % S_XS)
        A('s_mov_b32 m0, %d' % (XSL + (w - 2) * 8192 + (f // 4) * 4096))
        A('buffer_load_dwordx4 v1, %s, s%d offen offset:%d lds' % (WS, S_XS if f < 4 else 8, (f % 4) * 1024))
    A('s_add_u32 s%d, s%d, %d' % (S_XS, S_XS, 28 * 1024))

def slots(A, w):
    A('s_and_b32 s8, s%d, 3' % S_STEP)
    A('s_lshl_b32 s%d, s8, 13' % S_MPOLL)
    A('s_add_u32 s%d, s%d, %d' % (S_MPOLL, S_MPOLL, L.MEMR + OWN[w][0] * 1024))

def slots2(A, w):
    o = []
    o.append('s_and_b32 s8, s%d, 3' % S_STEP)
    o.append('s_mul_i32 s9, s8, %d' % L.SR_SLOT)
    o.append('s_add_u32 s%d, s9, %d' % (S_SPOLL, L.SR + w * 5120))
    o.append('s_add_u32 s%d, s9, s12' % S_SPUB)
    o.append('s_xor_b32 s8, s8, 2')
    o.append('s_mul_i32 s9, s8, %d' % L.SR_SLOT)
    o.append('s_add_u32 s%d, s9, s13' % S_SCLR)
    if w == 0:
        o.append('s_lshl_b32 s9, s8, 13')
        o.append('s_add_u32 s%d, s9, s14' % S_MCLR)
        o.append('s_add_u32 s8, s%d, 1' % S_STEP)
        o.append('s_and_b32 s8, s8, 3')
        o.append('s_lshl_b32 s9, s8, 13')
        o.append('s_add_u32 s%d, s9, s14' % S_MPUB)
    return o

SPSETS = {1: [0, 1, 2, 3, 4, 5, 6], 2: [0, 1, 4, 'iss', 'ufin', 'j0', 5], 3: [0, 5, 'mx', 'exp', 'pz', 'b3', 6], 4: [0, 1, 'own', 'b1', 2, 'tend', 3], 5: [0], 6: [1, 3, 4, 'iss', 'j0', 5, 6]}
def stamp(A, cfg, i):
    if cfg.get('stamps'):
        sp = SPSETS[cfg.get('sp', 1)]
        if i in sp:
            k = sp.index(i)
            A('%s s[%d:%d]' % ('s_memrealtime' if cfg.get('rt') else 's_memtime', S_T0 + 2 * k, S_T0 + 2 * k + 1))

ALT = 76
def mset(w, which):
    own = OWN[w]
    return [M0 + 4 * k for k in own] if which == 0 else [ALT + 4 * n for n in range(len(own))]

def poll_mem(A, w, tag, cfg):
    own = OWN[w]
    n = len(own)
    def issue(which):
        for i, b in enumerate(mset(w, which)):
            A('buffer_load_dwordx4 %s, v1, %s, s%d offen offset:%d sc1' % (v(b, 4), WS, S_MPOLL, i * 1024))
    def check(which):
        bs = mset(w, which)
        regs = [b + q for b in bs for q in range(4)]
        if n == 2:
            A('s_waitcnt vmcnt(3)')
            A('v_max3_u32 v2, v%d, v%d, v%d' % tuple(regs[0:3]))
            A('s_waitcnt vmcnt(2)')
            A('v_max3_u32 v2, v2, v%d, v%d' % tuple(regs[3:5]))
            A('v_max3_u32 v2, v2, v%d, v%d' % tuple(regs[5:7]))
            A('v_max_u32 v2, v2, v%d' % regs[7])
        else:
            A('s_waitcnt vmcnt(1)')
            A('v_max3_u32 v2, v%d, v%d, v%d' % tuple(regs[0:3]))
            A('v_max_u32 v2, v2, v%d' % regs[3])
        A('v_cmp_eq_u32 vcc, -1, v2')
    issue(1)
    A('s_mov_b32 s%d, 0' % S_CNT)
    for x in slots2(A, w):
        A(x)
    for _ in range(cfg.get('mgap', 2)):
        A('s_nop 7')
    A.label(tag + '_mp')
    issue(0)
    check(1)
    A('s_cbranch_vccz %s_g1' % tag)
    issue(1)
    A('s_add_u32 s%d, s%d, 1' % (S_CNT, S_CNT))
    A('s_cmp_ge_u32 s%d, %d' % (S_CNT, POLL_LIMIT))
    A('s_cbranch_scc1 chain_abort')
    check(0)
    A('s_cbranch_vccnz %s_mp' % tag)

class UEmit:
    def __init__(self, A, w, on):
        self.A, self.w = A, w
        self.q = [(hb, k) for hb in range(4) for k in range(7) if WBreg(w, hb, k) is not None] if on else []
        self.lq = [k for k in range(7)] if (on and w < 2) else []
        self.lw = [44, 52]
        self.pre = 0
    def prefetch_lds(self, n):
        while self.pre < min(n, 7) and self.lq:
            k = self.pre
            d = self.lw[k % 2]
            self.A('ds_read_b128 %s, v%d offset:%d' % (v(d, 4), [8, 12][self.w], k * 2048))
            self.A('ds_read_b128 %s, v%d offset:%d' % (v(d + 4, 4), [8, 12][self.w], k * 2048 + 1024))
            self.pre += 1
    def emit(self, n):
        for _ in range(n):
            if not self.q:
                return
            hb, k = self.q.pop(0)
            smf(self.A, UACC + 4 * hb, M(k), rr(WBreg(self.w, hb, k)))
    def rest(self, hooks):
        n = 0
        hooks = dict(hooks)
        def tick():
            nonlocal n
            n += 1
            if n in hooks:
                hooks.pop(n)()
        self.prefetch_lds(2)
        first = True
        while self.q or self.lq:
            for _ in range((3 if first else 1) if self.lq else 1):
                if self.q:
                    self.emit(1)
                    tick()
            first = False
            if self.lq:
                k = self.lq.pop(0)
                self.A('s_waitcnt lgkmcnt(%d)' % (2 * (self.pre - k - 1)))
                smf(self.A, UACC + 12, M(k), v(self.lw[k % 2], 8))
                self.prefetch_lds(k + 3)
                tick()
        for k in sorted(hooks):
            hooks[k]()

def u_finish(A, w, sfx):
    for hb in range(4):
        u = UACC + 4 * hb
        A('v_add_f32 v%d, v%d, v%d' % (u, u, u + 2))
        A('v_add_f32 v%d, v%d, v%d' % (u + 1, u + 1, u + 3))
        A('v_cvt_pk_bf16_f32 v%d, v%d, v%d' % (UO + [0, 1, 4, 5][hb], u, u + 1))

def t0_chores(A, w, brole, sfx, tag, cfg):
    o = []
    if w < 3:
        o.append(['buffer_store_dword v3, v4, %s, s%d offen%s' % (WS, S_SCLR, sfx)])
    if brole:
        vx = []
        if not cfg.get('novx'):
            vx.append(['s_mov_b32 m0, %d' % (VXL + w * 4096), 's_add_u32 s%d, s%d, 128' % (S_CV, S_CV)])
            for j in range(4):
                vx.append(['buffer_load_dwordx4 v1, %s, s%d offen offset:%d sc1 lds' % (WS, S_VX, j * 1024)])
            vx.append(['s_add_u32 s%d, s%d, %d' % (S_VX, S_VX, L.VX_SEG)])
        o = vx + o
    if w == 0 and brole:
        o.append(['buffer_store_dword v3, v4, %s, s%d offen%s' % (WS, S_MCLR, sfx)])
    return o

def stage_and_T(A, w, brole, sfx, tag, cfg, U, last=False):
    own = OWN[w]
    tiles = TILES[w]
    nT = len(tiles)
    others = [k for k in range(7) if k not in own]
    cw = not cfg.get('stamps') or cfg.get('sp') == 5
    ownops = [(tl, n) for n in range(len(own)) for tl in range(nT)] if not last else []
    pre = cfg.get('pre', 2) if w < 3 else 1
    nvm = 0
    for which in (0, 1):
        A.label('%s_g%d' % (tag, which))
        stamp(A, cfg, 1)
        bs = mset(w, which)
        for n, k in enumerate(own):
            A('ds_write_b128 v1, %s offset:%d' % (v(bs[n], 4), MB + k * 1024))
        for tl, n in ownops[:pre]:
            smf(A, TACC + 4 * tl, v(bs[n], 4), WA(tl, own[n]))
        if brole and not last and not cfg.get('novx'):
            A('s_cmp_lt_u32 s100, 28')
            A('s_cbranch_scc1 %s_vw%d' % (tag, which))
            A.label('%s_vok%d' % (tag, which))
        stamp(A, cfg, 'own')
        A('s_waitcnt lgkmcnt(0)')
        A('s_barrier')
        stamp(A, cfg, 'b1')
        for k in others:
            A('ds_read_b128 %s, v1 offset:%d' % (M(k), MB + k * 1024))
        fill = t0_chores(A, w, brole, sfx, tag, cfg) if not last else []
        nvm = sum(1 for g in fill for x in g if x.startswith('buffer_'))
        for tl, n in ownops[pre:]:
            smf(A, TACC + 4 * tl, v(bs[n], 4), WA(tl, own[n]))
            if fill:
                for x in fill.pop(0):
                    A(x)
        if which == 0:
            A('s_branch %s_gj' % tag)
    A.label(tag + '_gj')
    if last:
        A('s_waitcnt vmcnt(0) lgkmcnt(0)')
        return
    hreads = []
    if w >= 2:
        for f in range(7):
            hreads.append(['ds_read_b128 %s, v1 offset:%d' % (v(H0 + 4 * f, 4), XSL + (w - 2) * 8192 + f * 1024)])
    elif w == 1:
        for f in range(7):
            o = (f % 2) * 128
            g = ['ds_read2_b32 %s, v2 offset0:%d offset1:%d' % (v(H0 + 4 * f, 2), o, o + 8)]
            if f % 2 == 0:
                g = ['v_add_u32 v2, %d, v8' % (f * 512)] + g
            hreads.append(g)
            hreads.append(['ds_read2_b32 %s, v2 offset0:%d offset1:%d' % (v(H0 + 4 * f + 2, 2), o + 1, o + 9)])
    if w >= 1:
        hreads.append(['v_mov_b32 v%d, 0' % SACC, 'v_mov_b32 v%d, 0' % (SACC + 1)])
        hreads.append(['v_mov_b32 v%d, 0' % (SACC + 2), 'v_mov_b32 v%d, 0' % (SACC + 3)])
    stamp(A, cfg, 2)
    def tile_epi(tl):
        t = TACC + 4 * tl
        return [['v_add_f32 v%d, v%d, v%d' % (t, t, t + 2), 'v_add_f32 v%d, v%d, v%d' % (t + 1, t + 1, t + 3)],
                ['v_cvt_pk_bf16_f32 v%d, v%d, v%d' % (t, t, t + 1), 'ds_write_b32 v6, v%d offset:%d' % (t, tiles[tl] * 256)]]
    no = len(others)
    epi = []
    for tl in range(nT):
        for n, k in enumerate(others):
            if tl == 0:
                A('s_waitcnt lgkmcnt(%d)' % ((no - 1 - n) if cw else 0))
            smf(A, TACC + 4 * tl, M(k), WA(tl, k))
            if tl > 0 and n >= no - 2 and epi:
                g = epi.pop(0)
            elif fill:
                g = fill.pop(0)
            elif tl > 0 and hreads:
                g = hreads.pop(0)
                if w == 1 and hreads and len(g) == 1 and len(hreads[0]) == 1:
                    g = g + hreads.pop(0)
            else:
                g = []
            for x in g:
                A(x)
        epi = tile_epi(tl)
        if tl == 0:
            for g in fill:
                for x in g:
                    A(x)
            fill = []
            A('s_waitcnt vmcnt(%d)' % nvm)
    for g in fill + hreads:
        for x in g:
            A(x)
    stamp(A, cfg, 'tend')
    for g in epi:
        for x in g:
            A(x)
    U.emit(cfg.get('u1', 3))
    A('s_waitcnt lgkmcnt(0)')
    A('s_barrier')
    stamp(A, cfg, 3)
    if w >= 1:
        for kb in range(4):
            for hf in range(2):
                A('ds_read_b64_tr_b16 %s, v7 offset:%d' % (v(TACC + 4 * kb + 2 * hf, 2), kb * 1024 + hf * 128))
        U.emit(cfg.get('u2', 4))
        for kb in range(4):
            A('s_waitcnt lgkmcnt(%d)' % ((6 - 2 * kb) if cw else 0))
            smf(A, SACC, v(TACC + 4 * kb, 4), v(H0 + 8 * kb, 8))
        A('v_add_f32 v%d, v%d, v%d' % (SACC, SACC, SACC + 2))
        A('v_add_f32 v%d, v%d, v%d' % (SACC + 1, SACC + 1, SACC + 3))
        A('v_cvt_pk_bf16_f32 v%d, v%d, v%d' % (SACC, SACC, SACC + 1))
        A('v_pk_min_u16 v%d, v%d, s%d' % (SACC, SACC, S_GUARD))
        A('buffer_store_short v%d, v9, %s, s%d offen%s' % (SACC, WS, S_SPUB, sfx))
        A('buffer_store_short_d16_hi v%d, v9, %s, s%d offen offset:16%s' % (SACC, WS, S_SPUB, sfx))
    stamp(A, cfg, 4)

SPS = [[76 + i for i in range(20)], [44 + i for i in range(16)] + [112, 113, 114, 115]]
def sissue(A, which):
    for j in range(5):
        A('buffer_load_dwordx4 %s, v%d, %s, s%d offen offset:%d sc1' % (v(SPS[which][4 * j], 4), 1 if j < 4 else 10, WS, S_SPOLL, (j % 4) * 1024))

def sproc(A, which, after, cfg=None, first=False, w=0):
    SV = SPS[which]
    mx = 70
    for j in range(5):
        A('s_waitcnt vmcnt(%d)' % (after + 4 - j))
        if j == 0 and cfg is not None:
            stamp(A, cfg, 'j0')
        for q in range(4):
            A('v_dot2_f32_bf16 v%d, v%d, s%d, 0' % (SV[4 * j + q], SV[4 * j + q], S_ONES))
        if j == 0:
            if first:
                for q in range(4):
                    A('ds_read_b128 %s, v1 offset:%d' % (v(M0 + 4 * q, 4), VXL + w * 4096 + q * 1024))
        else:
            p = 4 * (j - 1)
            if j == 1:
                A('v_maximum3_f32 v%d, v%d, v%d, v%d' % (mx, SV[p], SV[p + 1], SV[p + 2]))
                A('v_maximum3_f32 v%d, v%d, v%d, v%d' % (mx, mx, SV[p + 3], SV[p + 3]))
            else:
                A('v_maximum3_f32 v%d, v%d, v%d, v%d' % (mx, mx, SV[p], SV[p + 1]))
                A('v_maximum3_f32 v%d, v%d, v%d, v%d' % (mx, mx, SV[p + 2], SV[p + 3]))
    A('v_maximum3_f32 v%d, v%d, v%d, v%d' % (mx, mx, SV[16], SV[17]))
    A('v_maximum3_f32 v%d, v%d, v%d, v%d' % (mx, mx, SV[18], SV[19]))
    A('v_cmp_u_f32 vcc, v%d, v%d' % (mx, mx))
    A('v_mov_b32 v71, v%d' % mx)

def softmax_pz(A, w, which, cfg):
    SV = SPS[which]
    mx, t, sm = 70, 71, 72
    stamp(A, cfg, 5)
    A('v_permlane16_swap_b32 v%d, v%d' % (mx, t))
    A('v_max_f32 v%d, v%d, v%d' % (mx, mx, t))
    stamp(A, cfg, 'mx')
    for i in range(0, 20, 2):
        A('v_pk_add_f32 %s, %s, %s op_sel_hi:[1,0] neg_lo:[0,1] neg_hi:[0,1]' % (v(SV[i], 2), v(SV[i], 2), v(mx, 2)))
    nvm = 0
    n0 = len(A.ins)
    for i in range(20):
        A('v_exp_f32 v%d, v%d' % (SV[i], SV[i]))
        if i == 0:
            A('s_load_dword s100, s[%d:%d], s%d' % (S_WS, S_WS + 1, S_CV))
        if i == 6 and not cfg.get('noxs'):
            xs_dma(A, w)
        if i >= 5 and i % 2 == 1:
            k = i - 3
            if k == 2:
                A('v_pk_add_f32 %s, %s, %s' % (v(sm, 2), v(SV[0], 2), v(SV[2], 2)))
            else:
                A('v_pk_add_f32 %s, %s, %s' % (v(sm, 2), v(sm, 2), v(SV[k], 2)))
    nvm = sum(1 for I in A.ins[n0:] if I.kind == 'vmem')
    A('v_pk_add_f32 %s, %s, %s' % (v(sm, 2), v(sm, 2), v(SV[18], 2)))
    A('v_add_f32 v%d, v%d, v%d' % (sm, sm, sm + 1))
    stamp(A, cfg, 'exp')
    A('v_mov_b32 v%d, v%d' % (t, sm))
    A('v_permlane16_swap_b32 v%d, v%d' % (sm, t))
    A('v_add_f32 v%d, v%d, v%d' % (sm, sm, t))
    A('v_rcp_f32 v%d, v%d' % (sm, sm))
    dst = [PX + i for i in range(8)] + [PM, PM + 2]
    order = [8, 9] + list(range(8))
    for n, pi in enumerate(order):
        A('v_pk_mul_f32 %s, %s, %s op_sel_hi:[1,0]' % (v(SV[2 * pi], 2), v(SV[2 * pi], 2), v(sm, 2)))
        A('v_cvt_pk_bf16_f32 v%d, v%d, v%d' % (dst[pi], SV[2 * pi], SV[2 * pi] + 1))
        if n == 3:
            smf(A, UACC, v(PM, 4), v(UO, 8))
        if n == 7:
            A('s_waitcnt lgkmcnt(0)')
            smf(A, UACC, v(PX, 4), v(M0, 8))
    smf(A, UACC, v(PX + 4, 4), v(M0 + 8, 8))
    return nvm

def phase_B(A, w, sfx, tag, cfg, U):
    A('s_mov_b32 s%d, 0' % S_CNT)
    def h0():
        sissue(A, 0)
        stamp(A, cfg, 'iss')
    o = cfg.get('u0', 12) if w == 0 else 0
    a0 = cfg.get('u3', 12) + o
    a1 = max(a0 + cfg.get('u4', 8), 17 if w < 2 else 0)
    U.rest({a0: h0, a1: lambda: sissue(A, 1)})
    u_finish(A, w, sfx)
    for q in range(4):
        A('v_mov_b32 v%d, 0' % (UACC + q))
    stamp(A, cfg, 'ufin')
    sproc(A, 0, 5, cfg, True, w)
    A('s_cbranch_vccnz %s_r0' % tag)
    A.label(tag + '_k0')
    nvm = softmax_pz(A, w, 0, cfg)
    A.label(tag + '_kj')
    stamp(A, cfg, 'pz')
    A('s_waitcnt vmcnt(%d)' % nvm)
    zs = [TACC + q for q in range(4 * len(TILES[w]))]
    for z in zs[:6]:
        A('v_mov_b32 v%d, 0' % z)
    A('v_add_f32 v%d, v%d, v%d' % (UACC, UACC, UACC + 2))
    A('v_add_f32 v%d, v%d, v%d' % (UACC + 1, UACC + 1, UACC + 3))
    A('ds_write2_b32 v11, v%d, v%d offset0:0 offset1:16' % (UACC, UACC + 1))
    for z in zs[6:]:
        A('v_mov_b32 v%d, 0' % z)
    A('s_waitcnt lgkmcnt(0)')
    A('s_barrier')
    stamp(A, cfg, 'b3')
    if w == 0:
        A('ds_read2_b64 v[64:67], v12 offset0:0 offset1:64')
        A('ds_read2_b64 v[68:71], v12 offset0:128 offset1:192')
        A('s_waitcnt lgkmcnt(0)')
        A('v_pk_add_f32 v[64:65], v[64:65], v[66:67]')
        A('v_pk_add_f32 v[68:69], v[68:69], v[70:71]')
        A('v_pk_add_f32 v[64:65], v[64:65], v[68:69]')
        A('v_cvt_pk_bf16_f32 v15, v64, v65')
        A('v_min_u32 v15, -2, v15')
        A('buffer_store_dword v15, v13, %s, s%d offen%s' % (WS, S_MPUB, sfx))
    stamp(A, cfg, 6)
    for q in range(16):
        A('v_mov_b32 v%d, 0' % (UACC + q))

def slow_blocks(A, w, tag, cfg):
    A.label(tag + '_r0')
    sissue(A, 0)
    A('s_add_u32 s%d, s%d, 1' % (S_CNT, S_CNT))
    sproc(A, 1, 5, cfg)
    A('s_cbranch_vccz %s_k1' % tag)
    A('s_and_b32 s8, s%d, 31' % S_CNT)
    A('s_cmp_eq_u32 s8, 31')
    A('s_cbranch_scc1 %s_x' % tag)
    A.label(tag + '_r1')
    sissue(A, 1)
    A('s_add_u32 s%d, s%d, 1' % (S_CNT, S_CNT))
    sproc(A, 0, 5, cfg)
    A('s_cbranch_vccz %s_k0' % tag)
    A('s_branch %s_r0' % tag)
    A.label(tag + '_k1')
    softmax_pz(A, w, 1, cfg)
    A('s_branch %s_kj' % tag)
    A.label(tag + '_x')
    A('s_cmp_ge_u32 s%d, %d' % (S_CNT, POLL_LIMIT))
    A('s_cbranch_scc1 chain_abort')
    A('s_waitcnt vmcnt(0)')
    SP = SPS[0]
    A('v_pk_max_u16 v2, v%d, v%d' % (SP[0], SP[1]))
    for q in range(2, 20):
        A('v_pk_max_u16 v2, v2, v%d' % SP[q])
    A('v_lshrrev_b32 v69, 16, v2')
    A('v_and_b32 v2, 0xffff, v2')
    A('v_max_u32 v2, v2, v69')
    A('v_cmp_eq_u32 vcc, 0xffff, v2')
    A('s_cbranch_vccnz %s_r1' % tag)
    sproc(A, 0, 0)
    A('s_branch %s_k0' % tag)
    if not cfg.get('novx'):
        for which in (0, 1):
            A.label('%s_vw%d' % (tag, which))
            A('v_mov_b32 v2, 0')
            wait_counter(A, S_CV, 28, 11, tmp=92, sleep=1)
            A('s_branch %s_vok%d' % (tag, which))

def dump_stamps(A, w, cfg):
    if not cfg.get('stamps'):
        return
    A('s_waitcnt lgkmcnt(0)')
    for i in range(7):
        A('v_writelane_b32 v2, s%d, %d' % (S_T0 + 2 * i, i))
    A('v_writelane_b32 v2, s%d, 7' % S_CNT)
    A('s_lshl_b32 s8, s%d, 8' % S_STEP)
    A('s_add_u32 s8, s8, %d' % (98304 + w * 16384 - 1024))
    A('v_add_u32 v76, s8, v4')
    A('ds_write_b32 v76, v2')

def flush_stamps(A, w, cfg):
    if not cfg.get('stamps'):
        return
    A('s_waitcnt lgkmcnt(0)')
    A('s_lshl_b32 s8, s7, 2')
    A('s_add_u32 s8, s8, %d' % w)
    A('s_lshl_b32 s8, s8, 14')
    A('s_add_u32 s8, s8, %d' % L.DBG)
    A('v_add_u32 v76, %d, v1' % (98304 + w * 16384 - 1024))
    for i in range(16):
        A('ds_read_b128 v[80:83], v76 offset:%d' % (i * 1024))
        A('s_waitcnt lgkmcnt(0)')
        A('buffer_store_dwordx4 v[80:83], v1, %s, s8 offen' % WS)
        A('s_add_u32 s8, s8, 1024')
        A('s_waitcnt vmcnt(0)')

def ext_pub(A, w):
    A('s_lshl_b32 s8, s%d, 13' % S_STEP)
    A('s_add_u32 s8, s8, %d' % (L.MEMX + OWN[w][0] * 1024))
    for n, k in enumerate(OWN[w]):
        A('buffer_store_dwordx4 %s, v1, %s, s8 offen offset:%d sc1' % (M(k), WS, n * 1024))
    A('s_lshl_b32 s8, s%d, 7' % S_STEP)
    A('s_add_u32 s8, s8, %d' % (L.CNT + L.C_M * 128))
    A('v_mov_b32 v2, 1')
    A('s_waitcnt vmcnt(0)')
    A('s_barrier')
    if w == 0:
        A('buffer_store_dword v2, off, %s, s8 sc1' % WS)

def body(A, w, brole, fast, cfg):
    tag = 'ch%d%s%s' % (w, 'b' if brole else 'a', 'f' if fast else 's')
    sfx = '' if fast else ' sc1'
    A.label(tag)
    for q in range(16):
        A('v_mov_b32 v%d, 0' % (TACC + q))
        A('v_mov_b32 v%d, 0' % (UACC + q))
    A.label(tag + '_loop')
    slots(A, w)
    stamp(A, cfg, 0)
    poll_mem(A, w, tag, cfg)
    U = UEmit(A, w, brole)
    stage_and_T(A, w, brole, sfx, tag, cfg, U)
    if brole:
        phase_B(A, w, sfx, tag, cfg, U)
    else:
        xs_dma(A, w)
        for tl in range(len(TILES[w])):
            for q in range(4):
                A('v_mov_b32 v%d, 0' % (TACC + 4 * tl + q))
        A('s_add_u32 s8, s%d, s7' % S_STEP)
        A('s_and_b32 s8, s8, 3')
        A('s_cmp_lg_u32 s8, 0')
        A('s_cbranch_scc1 %s_np' % tag)
        ext_pub(A, w)
        A.label(tag + '_np')
    dump_stamps(A, w, cfg)
    A('s_add_u32 s%d, s%d, 1' % (S_STEP, S_STEP))
    A('s_cmp_lt_u32 s%d, 63' % S_STEP)
    A('s_cbranch_scc1 %s_loop' % tag)
    if not brole:
        A('s_cmp_lg_u32 s7, 28')
        A('s_cbranch_scc1 %s_end' % tag)
        slots(A, w)
        poll_mem(A, w, tag + 't', cfg)
        A.label(tag + 't_g0')
        A.label(tag + 't_g1')
        A('s_waitcnt vmcnt(0)')
        ext_pub(A, w)
        A.label(tag + '_end')
    flush_stamps(A, w, cfg)
    A('s_endpgm')
    if brole:
        slow_blocks(A, w, tag, cfg)

def role_chain(A, cfg):
    setup(A)
    for w in range(4):
        if w < 3:
            A('s_cmp_lg_u32 s6, %d' % w)
            A('s_cbranch_scc1 chw%d' % (w + 1))
        for brole in (True, False):
            if brole:
                A('s_cmp_ge_u32 s7, 28')
                A('s_cbranch_scc1 chw%da' % w)
            else:
                A.label('chw%da' % w)
            wave_setup(A, w, brole)
            xs_dma(A, w)
            if cfg.get('novx'):
                for q in range(4):
                    A('v_mov_b32 v%d, 0' % (16 + q))
                for q in range(4):
                    A('ds_write_b128 v1, v[16:19] offset:%d' % (VXL + w * 4096 + q * 1024))
            A('s_mov_b32 s100, 0')
            A('v_mov_b32 v2, 0')
            A('s_mov_b32 s9, %d' % (L.CNT + L.C_RDV * 128))
            lp = A.newlabel('rdv')
            A('s_mov_b32 s%d, 0' % S_CNT)
            A.label(lp)
            A('buffer_load_dword v2, off, %s, s9 sc1' % WS)
            A('s_add_u32 s%d, s%d, 1' % (S_CNT, S_CNT))
            A('s_cmp_ge_u32 s%d, %d' % (S_CNT, POLL_LIMIT))
            A('s_cbranch_scc1 chain_abort')
            A('s_waitcnt vmcnt(0) lgkmcnt(0)')
            A('v_readfirstlane_b32 s8, v2')
            A('s_and_b32 s10, s8, 0xffff')
            A('s_cmp_lt_u32 s10, 32')
            A('s_cbranch_scc1 %s' % lp)
            A('s_barrier')
            t = 'ch%d%s' % (w, 'b' if brole else 'a')
            if cfg.get('force_slow'):
                A('s_branch %ss' % t)
            else:
                A('s_cmp_gt_u32 s8, 0xffff')
                A('s_cbranch_scc1 %ss' % t)
                A('s_branch %sf' % t)
        if w < 3:
            A.label('chw%d' % (w + 1))
    for w in range(4):
        for brole in (True, False):
            for fast in (True, False):
                body(A, w, brole, fast, cfg)
    A.label('chain_abort')
    abort(A, 12)
```

```python
from asmlib import *
import layout as L
import struct

def f2u(x):
    return struct.unpack('<I', struct.pack('<f', x))[0]

S_X, S_MEM0, S_WQ, S_WK, S_WV, S_WO = 16, 18, 20, 22, 24, 26
S_WG, S_WU, S_WD, S_OUT, S_DBG, S_WS = 32, 34, 36, 38, 40, 42
SRD_WS = 44
SRD_A = 48
SRD_B = 52
SRD_C = 56
SRD_D = 60

def prologue(A):
    A('s_load_dwordx16 s[16:31], s[0:1], 0')
    A('s_load_dwordx8 s[32:39], s[0:1], 64')
    A('s_load_dwordx4 s[40:43], s[0:1], 96')
    A('s_waitcnt lgkmcnt(0)')
    srd(A, SRD_WS, S_WS, L.WS_SZ)

def srd(A, d, p, nbytes):
    A('s_mov_b32 s%d, s%d' % (d, p))
    A('s_and_b32 s%d, s%d, 0xffff' % (d + 1, p + 1))
    A('s_mov_b32 s%d, 0x%x' % (d + 2, nbytes))
    A('s_mov_b32 s%d, 0x20000' % (d + 3))

def xsum4(A, x, y, op='v_add_f32'):
    A('v_mov_b32 %s, %s' % (v(y), v(x)))
    A('v_permlane32_swap_b32 %s, %s' % (v(x), v(y)))
    A('%s %s, %s, %s' % (op, v(x), v(x), v(y)))
    A('v_mov_b32 %s, %s' % (v(y), v(x)))
    A('v_permlane16_swap_b32 %s, %s' % (v(x), v(y)))
    A('%s %s, %s, %s' % (op, v(x), v(x), v(y)))

def kdesc(name, vgpr, accum, sgpr=102):
    return '''.section .rodata,"a"
.p2align 6
.amdhsa_kernel %s
  .amdhsa_next_free_vgpr %d
  .amdhsa_next_free_sgpr %d
  .amdhsa_accum_offset %d
  .amdhsa_group_segment_fixed_size 0
  .amdhsa_kernarg_size 112
  .amdhsa_user_sgpr_count 2
  .amdhsa_user_sgpr_kernarg_segment_ptr 1
  .amdhsa_system_sgpr_workgroup_id_x 1
  .amdhsa_float_denorm_mode_32 3
.end_amdhsa_kernel
.text
''' % (name, vgpr, sgpr, accum)

def kstart(A, name):
    A('.globl %s' % name)
    A('.p2align 8')
    A('.type %s,@function' % name)
    A.label(name)
```

```python
from common import *
import math

SCALE = math.log2(math.e) / 16.0

def fold(A, isB):
    tag = 'fb' if isB else 'fa'
    W1 = S_WV if isB else S_WQ
    srd(A, SRD_A, W1, 448 * 8192)
    if isB:
        srd(A, SRD_B, S_WO, 16 * 256 * 896)
    else:
        srd(A, SRD_B, S_WK, 448 * 8192)
    A('v_and_b32 v1, 15, v0')
    A('v_lshrrev_b32 v2, 4, v0')
    A('v_lshrrev_b32 v3, 3, v1')
    A('v_lshlrev_b32 v3, 4, v3')
    A('v_bfe_u32 v4, v1, 1, 1')
    A('v_lshl_add_u32 v3, v4, 3, v3')
    A('v_bfe_u32 v4, v1, 2, 1')
    A('v_lshl_add_u32 v3, v4, 2, v3')
    A('v_and_b32 v4, 1, v1')
    A('v_add_u32 v3, v3, v4')
    A('v_lshlrev_b32 v3, 13, v3')
    A('v_lshl_add_u32 v3, v2, 4, v3')
    A('s_lshl_b32 s8, s4, 9')
    A('s_lshl_b32 s9, s6, 19')
    A('s_add_u32 s64, s9, s8')
    A('s_add_u32 s65, s64, 0x%x' % (2 * 8192))
    A('s_add_u32 s66, s64, 0x%x' % (32 * 8192))
    A('s_add_u32 s67, s65, 0x%x' % (32 * 8192))
    AF0, BF0, ACC = 16, 16 + 64, 256
    if isB:
        A('v_lshrrev_b32 v5, 3, v0')
        A('v_mul_u32_u24 v5, 896, v5')
        A('v_and_b32 v6, 7, v0')
        A('v_lshl_add_u32 v5, v6, 4, v5')
        A('s_mul_i32 s10, s4, %d' % (256 * 896))
        A('s_lshl_b32 s11, s5, 7')
        A('s_add_u32 s10, s10, s11')
        A('s_mul_i32 s11, s6, %d' % (8 * 896))
        A('s_add_u32 s10, s10, s11')
        A('s_lshl_b32 s11, s6, 10')
        for it in range(5):
            A('s_mov_b32 m0, s11')
            A('buffer_load_dwordx4 v5, s[%d:%d], s10 offen lds' % (SRD_B, SRD_B + 3))
            if it < 4:
                A('s_add_u32 s10, s10, %d' % (7 * 8 * 896))
                A('s_add_u32 s11, s11, %d' % (7 * 1024))
        A('v_lshrrev_b32 v6, 2, v1')
        A('v_lshl_add_u32 v6, v2, 3, v6')
        A('v_lshlrev_b32 v6, 7, v6')
        A('v_and_b32 v7, 3, v0')
        A('v_lshl_add_u32 v6, v7, 3, v6')
    else:
        A('v_lshlrev_b32 v6, 13, v1')
        A('v_lshl_add_u32 v6, v2, 4, v6')
        A('s_lshl_b32 s10, s5, 19')
        A('s_add_u32 s68, s10, s8')
        for t in range(1, 4):
            A('s_add_u32 s%d, s68, 0x%x' % (68 + t, t * 16 * 8192))

    def loadA(ks):
        for j in range(4):
            A('buffer_load_dwordx4 %s, v3, s[%d:%d], s%d offen offset:%d' % (v(AF0 + (ks % 4) * 16 + 4 * j, 4), SRD_A, SRD_A + 3, 64 + j, ks * 64))
    def loadB(ks):
        for t in range(4):
            A('buffer_load_dwordx4 %s, v6, s[%d:%d], s%d offen offset:%d' % (v(BF0 + (ks % 4) * 16 + 4 * t, 4), SRD_B, SRD_B + 3, 68 + t, ks * 64))
    def ldsB(ks):
        for t in range(4):
            for half in range(2):
                A('ds_read_b64_tr_b16 %s, v6 offset:%d' % (v(BF0 + (ks % 4) * 16 + 4 * t + 2 * half, 2), ks * 4096 + half * 512 + t * 32))
    per = 4 if isB else 8
    for ks in range(4):
        loadA(ks)
        if not isB:
            loadB(ks)
    if isB:
        A('s_waitcnt vmcnt(16)')
        A('s_barrier')
        ldsB(0)
    for ks in range(8):
        outstanding_after = min(3, 7 - ks) * per
        if isB:
            if ks < 7:
                ldsB(ks + 1)
                A('s_waitcnt vmcnt(%d) lgkmcnt(8)' % outstanding_after)
            else:
                A('s_waitcnt vmcnt(0) lgkmcnt(0)')
        else:
            A('s_waitcnt vmcnt(%d)' % outstanding_after)
        for j in range(4):
            for t in range(4):
                d = r(ACC + (j * 4 + t) * 4, 4)
                A('v_mfma_f32_16x16x32_bf16 %s, %s, %s, %s' % (d, v(AF0 + (ks % 4) * 16 + 4 * j, 4), v(BF0 + (ks % 4) * 16 + 4 * t, 4), '0' if ks == 0 else d))
        if ks + 4 < 8:
            loadA(ks + 4)
            if not isB:
                loadB(ks + 4)
    A('v_lshlrev_b32 v7, 4, v0')
    if isB:
        A('s_mul_i32 s10, s5, %d' % (4 * 16 * 14 * 1024))
        A('s_mul_i32 s11, s4, %d' % (14 * 1024))
        A('s_add_u32 s10, s10, s11')
        A('s_add_u32 s10, s10, %d' % L.BF)
        tstride = 16 * 14 * 1024
    else:
        A('s_mul_i32 s10, s4, %d' % (28 * 14 * 1024))
        A('s_mul_i32 s11, s5, %d' % (4 * 14 * 1024))
        A('s_add_u32 s10, s10, s11')
        A('s_add_u32 s10, s10, %d' % L.AF)
        tstride = 14 * 1024
        A('s_mov_b32 s12, 0x%x' % f2u(SCALE))
    A('s_lshl_b32 s11, s6, 11')
    A('s_add_u32 s10, s10, s11')
    for t in range(4):
        for pil in range(2):
            T = 16 + (t * 2 + pil) * 12
            for z in range(2):
                for q in range(4):
                    A('v_accvgpr_read_b32 %s, %s' % (v(T + z * 4 + q), r(ACC + ((pil * 2 + z) * 4 + t) * 4 + q)))
            if not isB:
                for q in range(8):
                    A('v_mul_f32 %s, s12, %s' % (v(T + q), v(T + q)))
            for q in range(4):
                A('v_cvt_pk_bf16_f32 %s, %s, %s' % (v(T + 8 + q), v(T + 2 * q), v(T + 2 * q + 1)))
            A('buffer_store_dwordx4 %s, v7, s[%d:%d], s10 offen offset:%d' % (v(T + 8, 4), SRD_WS, SRD_WS + 3, pil * 1024))
        if t < 3:
            A('s_add_u32 s10, s10, %d' % tstride)
    A('s_endpgm')

def rnd_bf(A, dst, src, tmp=None):
    A('v_cvt_pk_bf16_f32 %s, %s, %s' % (v(dst), v(src), v(src)))
    A('v_and_b32 %s, 0xffff0000, %s' % (v(dst), v(dst)))

def ln(A):
    srd(A, SRD_A, S_X, 2048 * 896)
    A('v_and_b32 v1, 15, v0')
    A('v_lshrrev_b32 v2, 4, v0')
    A('v_mul_u32_u24 v3, 896, v1')
    A('v_lshrrev_b32 v4, 1, v2')
    A('v_lshl_add_u32 v3, v4, 5, v3')
    A('v_and_b32 v4, 1, v2')
    A('v_lshl_add_u32 v3, v4, 3, v3')
    A('s_mul_i32 s8, s4, %d' % (16 * 896))
    RAW, F = 16, 80
    for pi in range(14):
        A('buffer_load_dwordx2 %s, v3, s[%d:%d], s8 offen offset:%d' % (v(RAW + 4 * pi, 2), SRD_A, SRD_A + 3, pi * 64))
        A('buffer_load_dwordx2 %s, v3, s[%d:%d], s8 offen offset:%d' % (v(RAW + 4 * pi + 2, 2), SRD_A, SRD_A + 3, pi * 64 + 16))
    A('s_waitcnt vmcnt(0)')
    for i in range(56):
        A('v_lshlrev_b32 %s, 16, %s' % (v(F + 2 * i), v(RAW + i)))
        A('v_and_b32 %s, 0xffff0000, %s' % (v(F + 2 * i + 1), v(RAW + i)))
    A('v_add_f32 v8, %s, %s' % (v(F), v(F + 1)))
    A('v_add_f32 v9, %s, %s' % (v(F + 2), v(F + 3)))
    for i in range(4, 112, 2):
        A('v_add_f32 v8, v8, %s' % v(F + i))
        A('v_add_f32 v9, v9, %s' % v(F + i + 1))
    A('v_add_f32 v8, v8, v9')
    xsum4(A, 8, 9)
    A('v_mul_f32 v8, 0x%x, v8' % f2u(1.0 / 448))
    A('v_mov_b32 v10, 0')
    A('v_mov_b32 v11, 0')
    for i in range(0, 112, 2):
        A('v_sub_f32 v12, %s, v8' % v(F + i))
        A('v_sub_f32 v13, %s, v8' % v(F + i + 1))
        A('v_fmac_f32 v10, v12, v12')
        A('v_fmac_f32 v11, v13, v13')
    A('v_add_f32 v10, v10, v11')
    xsum4(A, 10, 11)
    A('v_mul_f32 v10, 0x%x, v10' % f2u(1.0 / 448))
    rnd_bf(A, 8, 8)
    rnd_bf(A, 10, 10)
    A('v_add_f32 v10, 0x%x, v10' % f2u(1e-5))
    rnd_bf(A, 10, 10)
    A('v_sqrt_f32 v10, v10')
    rnd_bf(A, 10, 10)
    A('v_rcp_f32 v10, v10')
    A('v_lshlrev_b32 v7, 4, v0')
    A('s_mul_i32 s8, s4, %d' % (14 * 1024))
    A('s_add_u32 s8, s8, %d' % L.XN)
    A('s_add_u32 s9, s8, 4096')
    A('s_add_u32 s10, s8, 8192')
    A('s_add_u32 s11, s8, 12288')
    for pi in range(14):
        for i in range(4):
            pos = [0, 2, 1, 3][i]
            f = F + 8 * pi + 2 * i
            A('v_sub_f32 %s, %s, v8' % (v(f), v(f)))
            A('v_sub_f32 %s, %s, v8' % (v(f + 1), v(f + 1)))
            A('v_cvt_pk_bf16_f32 v12, %s, %s' % (v(f), v(f + 1)))
            A('v_lshlrev_b32 %s, 16, v12' % v(f))
            A('v_and_b32 %s, 0xffff0000, v12' % v(f + 1))
            A('v_mul_f32 %s, %s, v10' % (v(f), v(f)))
            A('v_mul_f32 %s, %s, v10' % (v(f + 1), v(f + 1)))
            A('v_cvt_pk_bf16_f32 %s, %s, %s' % (v(RAW + 4 * pi + pos), v(f), v(f + 1)))
        A('buffer_store_dwordx4 %s, v7, s[%d:%d], s%d offen offset:%d' % (v(RAW + 4 * pi, 4), SRD_WS, SRD_WS + 3, 8 + pi // 4, (pi % 4) * 1024))
    A('s_endpgm')

def init(A):
    srd(A, SRD_A, S_MEM0, 8 * 896)
    A('v_lshrrev_b32 v1, 4, v14')
    A('v_and_b32 v2, 15, v14')
    A('v_lshrrev_b32 v3, 2, v2')
    A('v_lshlrev_b32 v3, 1, v3')
    A('v_and_b32 v4, 1, v2')
    A('v_add_u32 v3, v3, v4')
    A('v_mul_u32_u24 v3, 896, v3')
    A('v_lshl_add_u32 v3, v1, 5, v3')
    A('v_bfe_u32 v4, v2, 1, 1')
    A('v_lshl_add_u32 v3, v4, 4, v3')
    A('buffer_load_dwordx4 v[16:19], v3, s[%d:%d], 0 offen' % (SRD_A, SRD_A + 3))
    A('v_lshlrev_b32 v6, 4, v14')
    for q in range(4):
        A('v_mov_b32 v%d, -1' % (24 + q))
        A('v_mov_b32 v%d, 0' % (28 + q))
    n = (L.RING_END - L.MEMR - L.MEMR_SLOT)
    off = L.MEMR + L.MEMR_SLOT
    step = 448 * 16
    A('s_mov_b32 s%d, s%d' % (SRD_B, SRD_WS)); A('s_mov_b32 s%d, s%d' % (SRD_B + 1, SRD_WS + 1))
    A('s_mov_b32 s%d, %d' % (SRD_B + 2, L.RING_END)); A('s_mov_b32 s%d, 0x20000' % (SRD_B + 3))
    for k in range((n + step - 1) // step):
        A('s_mov_b32 s8, %d' % (off + k * step))
        A('buffer_store_dwordx4 v[24:27], v6, s[%d:%d], s8 offen' % (SRD_B, SRD_B + 3))
    A('s_mov_b32 s%d, %d' % (SRD_B + 2, L.CNT + L.CNT_SZ))
    for k in range((L.CNT_SZ + step - 1) // step):
        A('s_mov_b32 s8, %d' % (L.CNT + k * step))
        A('buffer_store_dwordx4 v[28:31], v6, s[%d:%d], s8 offen' % (SRD_B, SRD_B + 3))
    A('s_waitcnt vmcnt(0)')
    for q in range(4):
        A('v_min_u32 v%d, -2, v%d' % (16 + q, 16 + q))
    A('s_mov_b32 s8, %d' % L.MEMR)
    A('buffer_store_dwordx4 v[16:19], v6, s[%d:%d], s8 offen' % (SRD_WS, SRD_WS + 3))
    A('s_mov_b32 s8, %d' % L.MEMX)
    A('buffer_store_dwordx4 v[16:19], v6, s[%d:%d], s8 offen' % (SRD_WS, SRD_WS + 3))
    A('s_barrier')
    A('v_mov_b32 v1, 1')
    A('s_mov_b32 s8, %d' % (L.CNT + L.C_M * 128))
    A('buffer_store_dword v1, off, s[%d:%d], s8' % (SRD_WS, SRD_WS + 3))
    A('s_endpgm')

def k1(A, name):
    kstart(A, name)
    A('s_cmp_ge_u32 s2, 244')
    A('s_cbranch_scc1 k1_exit')
    prologue(A)
    A('v_mov_b32 v14, v0')
    A('v_lshrrev_b32 v1, 6, v0')
    A('v_readfirstlane_b32 s6, v1')
    A('v_and_b32 v0, 63, v0')
    A('s_cmp_ge_u32 s2, 224')
    A('s_cbranch_scc1 k1_ln')
    A('s_cmp_ge_u32 s2, 112')
    A('s_cselect_b32 s3, 112, 0')
    A('s_sub_u32 s3, s2, s3')
    A('s_mul_i32 s4, s3, 9363')
    A('s_lshr_b32 s4, s4, 16')
    A('s_mul_i32 s5, s4, 7')
    A('s_sub_u32 s5, s3, s5')
    A('s_cmp_ge_u32 s2, 112')
    A('s_cbranch_scc1 k1_foldb')
    fold(A, False)
    A.label('k1_foldb')
    fold(A, True)
    A.label('k1_ln')
    A('s_cmp_eq_u32 s2, 243')
    A('s_cbranch_scc1 k1_init')
    A('s_sub_u32 s4, s2, 224')
    A('s_mul_i32 s4, s4, 7')
    A('s_add_u32 s4, s4, s6')
    A('s_cmp_ge_u32 s4, 128')
    A('s_cbranch_scc1 k1_exit')
    ln(A)
    A.label('k1_init')
    init(A)
    A.label('k1_exit')
    A('s_endpgm')
```

```python
NSEG = 64
def al(x, a=4096): return (x + a - 1) // a * a
XN = 0
XN_SZ = 128 * 14 * 1024
AF = al(XN + XN_SZ)
AF_SZ = 16 * 28 * 14 * 1024
BF = al(AF + AF_SZ)
BF_SZ = AF_SZ
VX = al(BF + BF_SZ)
VX_SEG = 28 * 16 * 1024
TX = al(VX + NSEG * VX_SEG)
TX_SEG = 16 * 14 * 2 * 1024
HF = al(TX + NSEG * TX_SEG)
HF_SEG = 56 * 2 * 1024
GB = al(HF + NSEG * HF_SEG)
GB_SZ = 2048 * 896
UX = al(GB + GB_SZ)
UX_SEG = 28 * 4 * 1024
MEMX = al(UX + NSEG * UX_SEG)
MEMX_SEG = 8192
PT = al(MEMX + NSEG * MEMX_SEG)
PT_SEG = 4 * 5 * 2 * 1024
MEMR = al(PT + NSEG * PT_SEG)
MEMR_SLOT = 8192
SR = MEMR + 4 * MEMR_SLOT
SR_SLOT = 16 * 1280 + 256
RING_END = SR + 4 * SR_SLOT
CNT = al(RING_END)
CNT_SZ = 64 * 1024
C_V, C_T, C_H, C_G, C_P = 0, 64, 128, 192, 256
C_M, C_U = 320, 384
C_TICKET = 448
C_XCC = 449
C_RDV = 450
DBG = al(CNT + CNT_SZ)
WS_SZ = 268435456

def hcol(pi, gb, e):
    return 16 * (2 * pi + (gb >> 1)) + 8 * ((e >> 1) & 1) + 4 * (gb & 1) + 2 * (e >> 2) + (e & 1)
def mrow(i, u):
    return 4 * (i >> 1) + 2 * u + (i & 1)
```

```python
from common import *
import workers as Wk
import chain as Ch
import k1 as K1
WS = Wk.WS

def mega(A, name, cfg):
    kstart(A, name)
    A('s_cmp_ge_u32 s2, 256')
    A('s_cbranch_scc1 mega_exit')
    prologue(A)
    A('v_lshrrev_b32 v1, 6, v0')
    A('v_readfirstlane_b32 s6, v1')
    A('v_and_b32 v0, 63, v0')
    A('v_lshlrev_b32 v1, 4, v0')
    A('v_mov_b32 v2, 0')
    A('v_and_b32 v3, 15, v0')
    A('v_lshrrev_b32 v4, 4, v0')
    A('s_getreg_b32 s5, hwreg(HW_REG_XCC_ID, 0, 4)')
    A('s_cmp_lg_u32 s6, 0')
    A('s_cbranch_scc1 el_done')
    A('s_mov_b64 exec, 1')
    A('v_mov_b32 v5, 1')
    A('s_cmp_lg_u32 s5, 0')
    A('s_cbranch_scc1 el_worker')
    A('s_mov_b32 s8, %d' % (L.CNT + L.C_XCC * 128))
    A('buffer_atomic_add v5, off, %s, s8 sc0 sc1' % WS)
    A('s_waitcnt vmcnt(0)')
    A('v_readfirstlane_b32 s7, v5')
    A('s_cmp_lt_u32 s7, 32')
    A('s_cbranch_scc0 el_worker')
    A('s_add_u32 s7, s7, 224')
    A('s_branch el_put')
    A.label('el_worker')
    A('v_mov_b32 v5, 1')
    A('s_mov_b32 s8, %d' % (L.CNT + L.C_TICKET * 128))
    A('buffer_atomic_add v5, off, %s, s8 sc0 sc1' % WS)
    A('s_waitcnt vmcnt(0)')
    A('v_readfirstlane_b32 s7, v5')
    A('s_cmp_lt_u32 s7, 224')
    A('s_cbranch_scc1 el_put')
    A('s_sub_u32 s7, %d, s7' % (255 + 224))
    A.label('el_put')
    A('v_mov_b32 v5, s7')
    A('v_mov_b32 v6, %d' % (160 * 1024 - 64))
    A('ds_write_b32 v6, v5')
    A('s_waitcnt lgkmcnt(0)')
    A('s_mov_b64 exec, -1')
    A.label('el_done')
    A('s_barrier')
    A('v_mov_b32 v6, %d' % (160 * 1024 - 64))
    A('ds_read_b32 v5, v6')
    A('s_waitcnt lgkmcnt(0)')
    A('v_readfirstlane_b32 s7, v5')
    en = cfg['roles']
    table = [('vx', 0, 56), ('tx', 56, 112), ('ffn', 112, 168), ('f1', 168, 184), ('f2', 184, 224), ('chain', 224, 256)]
    for nm, lo, hi in table:
        A('s_cmp_lt_u32 s7, %d' % hi)
        A('s_cbranch_scc1 role_%s' % nm)
    A('s_branch mega_exit')
    for nm, lo, hi in table:
        A.label('role_%s' % nm)
        if nm not in en:
            A('s_endpgm')
            continue
        if lo:
            A('s_sub_u32 s7, s7, %d' % lo)
        if nm == 'vx': Wk.role_vx(A)
        if nm == 'tx': Wk.role_tx(A)
        if nm == 'ffn': Wk.role_ffn(A)
        if nm == 'f1': Wk.role_f1(A)
        if nm == 'f2': Wk.role_f2(A, 40)
        if nm == 'chain': Ch.role_chain(A, cfg)
    A.label('mega_exit')
    A('s_endpgm')

def build_all(mode, build):
    parts = mode.split(',')
    cfg = {'roles': set(parts[0].split('+'))}
    if parts[0] == 'all':
        cfg['roles'] = {'vx', 'tx', 'ffn', 'f1', 'f2', 'chain'}
    for p in parts[1:]:
        if '=' in p:
            k, val = p.split('=')
            cfg[k] = int(val)
        else:
            cfg[p] = True
    def emit(A):
        K1.k1(A, 'prep_kernel')
        mega(A, 'main_kernel', cfg)
    return build([('prep_kernel', 244, 448, 36864), ('main_kernel', 256, 256, 163840)], emit,
                 [('prep_kernel', 256, 192), ('main_kernel', 512, 256)])
```

```python
from common import *
import math
LOG2E = math.log2(math.e)
WS = 's[%d:%d]' % (SRD_WS, SRD_WS + 3)
SA = 's[%d:%d]' % (SRD_A, SRD_A + 3)
SB = 's[%d:%d]' % (SRD_B, SRD_B + 3)
SC = 's[%d:%d]' % (SRD_C, SRD_C + 3)
SPIN_LIMIT = 400000

def abort(A, code):
    srd(A, SRD_D, S_DBG, 256)
    A('v_mov_b32 v2, 0')
    A('v_mov_b32 v5, %d' % (0xdead0000 + code))
    A('buffer_store_dword v5, v2, s[%d:%d], 0 offen offset:%d' % (SRD_D, SRD_D + 3, 4 * (code & 63)))
    A('s_endpgm')

def wait_counter(A, soff, target, code, tmp=12, sleep=2):
    l, d, ab = A.newlabel('wc'), A.newlabel('wd'), A.newlabel('wa')
    A('s_mov_b32 s99, 0')
    A.label(l)
    A('buffer_load_dword v%d, v2, %s, s%d offen sc1' % (tmp, WS, soff))
    A('s_waitcnt vmcnt(0)')
    A('v_readfirstlane_b32 s98, v%d' % tmp)
    A('s_cmp_ge_u32 s98, %s' % target)
    A('s_cbranch_scc1 %s' % d)
    A('s_sleep %d' % sleep)
    A('s_add_u32 s99, s99, 1')
    A('s_cmp_lt_u32 s99, %d' % SPIN_LIMIT)
    A('s_cbranch_scc1 %s' % l)
    abort(A, code)
    A.label(d)

def signal(A, soff):
    sk = A.newlabel('sg')
    A('s_cmp_lg_u32 s6, 0')
    A('s_cbranch_scc1 %s' % sk)
    A('s_mov_b64 exec, 1')
    A('v_mov_b32 v13, 1')
    A('buffer_atomic_add v13, v2, %s, s%d offen sc1' % (WS, soff))
    A('s_mov_b64 exec, -1')
    A.label(sk)

def silu_bf(A, x, t):
    A('v_mul_f32 v%d, 0x%x, v%d' % (t, f2u(-LOG2E), x))
    A('v_exp_f32 v%d, v%d' % (t, t))
    A('v_add_f32 v%d, 1.0, v%d' % (t, t))
    A('v_rcp_f32 v%d, v%d' % (t, t))
    A('v_mul_f32 v%d, v%d, v%d' % (x, x, t))

def rnd_pair(A, x0, x1, t):
    A('v_cvt_pk_bf16_f32 v%d, v%d, v%d' % (t, x0, x1))
    A('v_lshlrev_b32 v%d, 16, v%d' % (x0, t))
    A('v_and_b32 v%d, 0xffff0000, v%d' % (x1, t))

STR, ACC, TMP = 128, 64, 96
def W(tl, pi): return a((tl * 14 + pi) * 4, 4)
def D(tl_tok, tl): return ACC + (tl_tok * 4 + tl) * 4

def engine(A, kind):
    nm = 'eng_' + kind
    def slot_off(pi, tl):
        if kind == 'down':
            return (pi * 2 + tl) * 1024
        return (tl * 14 + pi) * 1024
    def issue(k, sbase):
        pi, tl = k // 2, k % 2
        off = slot_off(pi, tl)
        A('buffer_load_dwordx4 %s, v%d, %s, s%d offen offset:%d%s' % (v(STR + 4 * k, 4), 16 + off // 4096, WS, sbase, off % 4096, ' sc1' if kind == 'down' else ''))
    for q in range(7):
        A('v_add_u32 v%d, %d, v1' % (16 + q, q * 4096))
    NS = {'vx': 4, 'tx': 4, 'gu': 2, 'down': 2}[kind]
    A('s_mov_b32 s64, s8')
    if kind == 'down':
        A('s_lshl_b32 s69, s64, 7')
        A('s_add_u32 s69, s69, s15')
        wait_counter(A, 69, 14, 3)
    A('s_mul_i32 s65, s64, s11')
    A('s_add_u32 s65, s65, s10')
    for k in range(28):
        issue(k, 65)
    A('s_mov_b32 s67, -1')
    A('s_waitcnt vmcnt(0)')
    A.label(nm + '_loop')
    A('s_add_u32 s68, s64, s9')
    A('s_cmp_lt_u32 s68, 64')
    A('s_cselect_b32 s70, s68, s64')
    if kind == 'down':
        A('s_lshl_b32 s69, s70, 7')
        A('s_add_u32 s69, s69, s15')
        wait_counter(A, 69, 14, 4)
    A('s_mul_i32 s65, s70, s11')
    A('s_add_u32 s65, s65, s10')
    A('s_mul_i32 s66, s64, s13')
    A('s_add_u32 s66, s66, s12')
    for k in range(28):
        pi, tk = k // 2, k % 2
        if k == 10:
            A('s_waitcnt vmcnt(10)')
            sk = A.newlabel('ns')
            A('s_barrier')
            A('s_cmp_eq_u32 s67, -1')
            A('s_cbranch_scc1 %s' % sk)
            signal(A, 67)
            A.label(sk)
        else:
            A('s_waitcnt vmcnt(%d)' % (27 + NS if k < 10 else 27))
        for tl in range(4):
            d = v(D(tk, tl), 4)
            c = '0' if pi == 0 else d
            if kind == 'vx':
                A('v_mfma_f32_16x16x32_bf16 %s, %s, %s, %s' % (d, v(STR + 4 * k, 4), W(tl, pi), c))
            else:
                A('v_mfma_f32_16x16x32_bf16 %s, %s, %s, %s' % (d, W(tl, pi), v(STR + 4 * k, 4), c))
        issue(k, 65)
    if kind == 'vx':
        for j in range(4):
            b, aa = j >> 1, j & 1
            T = TMP + 4 * j
            A('v_cvt_pk_bf16_f32 v%d, v%d, v%d' % (T, D(b, 2 * aa), D(b, 2 * aa) + 1))
            A('v_cvt_pk_bf16_f32 v%d, v%d, v%d' % (T + 1, D(b, 2 * aa + 1), D(b, 2 * aa + 1) + 1))
            A('v_cvt_pk_bf16_f32 v%d, v%d, v%d' % (T + 2, D(b, 2 * aa) + 2, D(b, 2 * aa) + 3))
            A('v_cvt_pk_bf16_f32 v%d, v%d, v%d' % (T + 3, D(b, 2 * aa + 1) + 2, D(b, 2 * aa + 1) + 3))
            A('buffer_store_dwordx4 %s, v1, %s, s66 offen offset:%d sc1' % (v(T, 4), WS, j * 1024))
    elif kind == 'tx':
        for pl in range(2):
            for tk in range(2):
                T = TMP + 4 * (pl * 2 + tk)
                for z in range(2):
                    A('v_cvt_pk_bf16_f32 v%d, v%d, v%d' % (T + 2 * z, D(tk, 2 * pl + z), D(tk, 2 * pl + z) + 1))
                    A('v_cvt_pk_bf16_f32 v%d, v%d, v%d' % (T + 2 * z + 1, D(tk, 2 * pl + z) + 2, D(tk, 2 * pl + z) + 3))
                A('buffer_store_dwordx4 %s, v1, %s, s66 offen offset:%d sc1' % (v(T, 4), WS, (pl * 2 + tk) * 1024))
    elif kind == 'gu':
        for tk in range(2):
            T = TMP + 4 * tk
            for z in range(2):
                for p in range(2):
                    g0, u0 = D(tk, z) + 2 * p, D(tk, 2 + z) + 2 * p
                    rnd_pair(A, g0, g0 + 1, TMP + 8)
                    rnd_pair(A, u0, u0 + 1, TMP + 9)
                    silu_bf(A, g0, TMP + 10)
                    silu_bf(A, g0 + 1, TMP + 11)
                    rnd_pair(A, g0, g0 + 1, TMP + 8)
                    A('v_mul_f32 v%d, v%d, v%d' % (g0, g0, u0))
                    A('v_mul_f32 v%d, v%d, v%d' % (g0 + 1, g0 + 1, u0 + 1))
                    A('v_cvt_pk_bf16_f32 v%d, v%d, v%d' % (T + 2 * z + p, g0, g0 + 1))
            A('buffer_store_dwordx4 %s, v1, %s, s66 offen offset:%d sc1' % (v(T, 4), WS, tk * 1024))
    else:
        for j in range(8):
            A('ds_write_b128 v23, %s offset:%d' % (v(ACC + 4 * j, 4), j * 1024))
        A('s_waitcnt lgkmcnt(0)')
        A('s_barrier')
        for jj in range(2):
            for w in range(4):
                A('ds_read_b128 %s, v24 offset:%d' % (v(TMP + (jj * 4 + w) * 4, 4), w * 8192 + jj * 1024))
        A('s_waitcnt lgkmcnt(0)')
        A('s_barrier')
        for jj in range(2):
            T = TMP + jj * 16
            for q in range(4):
                A('v_add_f32 v%d, v%d, v%d' % (T + q, T + q, T + 4 + q))
                A('v_add_f32 v%d, v%d, v%d' % (T + 8 + q, T + 8 + q, T + 12 + q))
                A('v_add_f32 v%d, v%d, v%d' % (T + q, T + q, T + 8 + q))
            rnd_pair(A, T, T + 1, T + 4)
            rnd_pair(A, T + 2, T + 3, T + 5)
            for q in range(4):
                silu_bf(A, T + q, T + 4 + q)
            A('v_cvt_pk_bf16_f32 v%d, v%d, v%d' % (T + 8, T, T + 1))
            A('v_cvt_pk_bf16_f32 v%d, v%d, v%d' % (T + 9, T + 2, T + 3))
            A('buffer_store_dwordx2 %s, v25, %s, s66 offen offset:%d sc1' % (v(T + 8, 2), WS, jj * 32))
    A('s_lshl_b32 s67, s64, 7')
    A('s_add_u32 s67, s67, s14')
    A('s_mov_b32 s64, s68')
    A('s_cmp_lt_u32 s64, 64')
    A('s_cbranch_scc1 %s_loop' % nm)
    A('s_waitcnt vmcnt(0)')
    A('s_barrier')
    signal(A, 67)

def u_stage(A):
    A('v_bfe_u32 v5, v3, 1, 1')
    A('v_mul_u32_u24 v5, 0xaaaa, v5')
    A('v_add_u32 v5, 0x4444, v5')
    A('s_lshl_b32 s12, s62, 8')
    A('s_add_u32 s12, s12, %d' % L.UX)
    A('s_mov_b32 s64, s8')
    A.label('u_loop')
    for q in range(16):
        A('v_mov_b32 v%d, 0' % (ACC + q))
    A('s_lshl_b32 s68, s64, 7')
    A('s_add_u32 s69, s68, %d' % (L.CNT + L.C_M * 128))
    wait_counter(A, 69, 1, 13, sleep=1)
    A('s_lshl_b32 s65, s64, 13')
    A('s_add_u32 s65, s65, %d' % L.MEMX)
    for k in range(7):
        A('buffer_load_dwordx4 %s, v%d, %s, s65 offen offset:%d sc1' % (v(STR + 4 * k, 4), 16 + k // 4, WS, (k % 4) * 1024))
    A('s_mul_i32 s66, s64, %d' % L.UX_SEG)
    A('s_add_u32 s66, s66, s12')
    for k in range(7):
        A('s_waitcnt vmcnt(%d)' % (6 - k))
        for hb in range(4):
            A('v_smfmac_f32_16x16x64_bf16 %s, %s, %s, v5' % (v(ACC + 4 * hb, 4), v(STR + 4 * k, 4), a((hb * 14 + 2 * k) * 4, 8)))
    for hb in range(4):
        u = ACC + 4 * hb
        A('v_add_f32 v%d, v%d, v%d' % (u, u, u + 2))
        A('v_add_f32 v%d, v%d, v%d' % (u + 1, u + 1, u + 3))
        A('v_cvt_pk_bf16_f32 v%d, v%d, v%d' % (TMP + hb, u, u + 1))
    A('buffer_store_dwordx4 %s, v1, %s, s66 offen sc1' % (v(TMP, 4), WS))
    A('s_add_u32 s69, s68, %d' % (L.CNT + L.C_U * 128))
    A('s_waitcnt vmcnt(0)')
    A('s_barrier')
    signal(A, 69)
    A('s_add_u32 s64, s64, 2')
    A('s_cmp_lt_u32 s64, 64')
    A('s_cbranch_scc1 u_loop')

def role_vx(A):
    A('s_cmp_ge_u32 s7, 28')
    A('s_cselect_b32 s8, 1, 0')
    A('s_mul_i32 s64, s8, 28')
    A('s_sub_u32 s64, s7, s64')
    A('s_mov_b32 s9, 2')
    A('s_lshl_b32 s65, s64, 4')
    A('s_lshl_b32 s66, s6, 2')
    A('s_add_u32 s65, s65, s66')
    A('s_mul_i32 s66, s65, 14336')
    A('s_add_u32 s66, s66, %d' % L.BF)
    for i in range(56):
        A('buffer_load_dwordx4 %s, v1, %s, s66 offen offset:%d' % (a(4 * i, 4), WS, (i % 4) * 1024))
        if i % 4 == 3:
            A('s_add_u32 s66, s66, 4096')
    A('s_mov_b32 s10, %d' % L.XN)
    A('s_mov_b32 s11, %d' % (28 * 1024))
    A('s_lshl_b32 s12, s65, 10')
    A('s_add_u32 s12, s12, %d' % L.VX)
    A('s_mov_b32 s13, %d' % L.VX_SEG)
    A('s_mov_b32 s14, %d' % (L.CNT + L.C_V * 128))
    A('s_waitcnt vmcnt(30)')
    A('s_mov_b32 s62, s65')
    engine(A, 'vx')
    u_stage(A)
    A('s_endpgm')

def role_tx(A):
    A('s_cmp_ge_u32 s7, 28')
    A('s_cselect_b32 s8, 1, 0')
    A('s_mul_i32 s64, s8, 28')
    A('s_sub_u32 s64, s7, s64')
    A('s_mov_b32 s9, 2')
    A('s_lshl_b32 s65, s64, 3')
    A('s_lshl_b32 s66, s6, 1')
    A('s_add_u32 s65, s65, s66')
    A('v_lshrrev_b32 v5, 3, v3')
    A('v_mul_u32_u24 v5, 14336, v5')
    A('v_lshl_add_u32 v5, v4, 8, v5')
    A('v_bfe_u32 v6, v3, 1, 1')
    A('v_lshl_add_u32 v5, v6, 7, v5')
    A('v_bfe_u32 v6, v3, 2, 1')
    A('v_lshl_add_u32 v5, v6, 6, v5')
    A('v_and_b32 v6, 1, v3')
    A('v_lshl_add_u32 v5, v6, 4, v5')
    for pl in range(2):
        A('s_add_u32 s66, s65, %d' % pl)
        A('s_mul_i32 s66, s66, %d' % (2 * 14336))
        A('s_add_u32 s66, s66, %d' % L.AF)
        for pi in range(14):
            for z in range(2):
                A('buffer_load_dwordx4 %s, v5, %s, s66 offen offset:%d' % (W(2 * pl + z, pi), WS, (pi % 4) * 1024 + z * 32))
            if pi % 4 == 3:
                A('s_add_u32 s66, s66, 4096')
    A('s_mov_b32 s10, %d' % L.XN)
    A('s_mov_b32 s11, %d' % (28 * 1024))
    A('s_lshl_b32 s12, s65, 11')
    A('s_add_u32 s12, s12, %d' % L.TX)
    A('s_mov_b32 s13, %d' % L.TX_SEG)
    A('s_mov_b32 s14, %d' % (L.CNT + L.C_T * 128))
    A('s_waitcnt vmcnt(30)')
    engine(A, 'tx')
    A('s_endpgm')

def role_ffn(A):
    A('s_mul_i32 s8, s7, 4682')
    A('s_lshr_b32 s8, s8, 16')
    A('s_mul_i32 s64, s8, 14')
    A('s_sub_u32 s64, s7, s64')
    A('s_mov_b32 s9, 4')
    srd(A, SRD_A, S_WG, 448 * 3584)
    srd(A, SRD_B, S_WU, 448 * 3584)
    A('v_mul_u32_u24 v5, 3584, v4')
    A('v_lshl_add_u32 v5, v3, 4, v5')
    A('v_lshrrev_b32 v6, 1, v4')
    A('v_lshlrev_b32 v6, 12, v6')
    A('v_bfe_u32 v7, v3, 3, 1')
    A('v_lshl_add_u32 v6, v7, 11, v6')
    A('v_and_b32 v7, 1, v4')
    A('v_lshl_add_u32 v6, v7, 10, v6')
    A('v_bfe_u32 v7, v3, 2, 1')
    A('v_lshl_add_u32 v6, v7, 8, v6')
    A('v_and_b32 v7, 3, v3')
    A('v_lshl_add_u32 v6, v7, 3, v6')
    A('s_lshl_b32 s65, s6, 6')
    A('v_add_u32 v6, s65, v6')
    A('v_add_u32 v7, %d, v6' % (7 * 8192))
    for ph in range(2):
        A('s_mul_i32 s65, s6, %d' % (28 * 4 * 3584))
        A('s_lshl_b32 s66, s64, 8')
        A('s_add_u32 s65, s65, s66')
        A('s_mul_i32 s66, s6, %d' % (28 * 1024))
        for i in range(28):
            A('s_mov_b32 m0, s66')
            A('buffer_load_dwordx4 v5, %s, s65 offen lds' % (SA if ph == 0 else SB))
            A('s_add_u32 s65, s65, %d' % (4 * 3584))
            A('s_add_u32 s66, s66, 1024')
        A('s_waitcnt vmcnt(0)')
        A('s_barrier')
        n = 0
        for z in range(2):
            for pi in range(14):
                for half in range(2):
                    A('ds_read_b64_tr_b16 %s, v%d offset:%d' % (a(((2 * ph + z) * 14 + pi) * 4 + 2 * half, 2), 6 if pi < 7 else 7, (pi % 7) * 8192 + half * 512 + z * 32))
        A('s_waitcnt lgkmcnt(0)')
        A('s_barrier')
    A('s_mov_b32 s10, %d' % L.XN)
    A('s_mov_b32 s11, %d' % (28 * 1024))
    A('s_lshl_b32 s12, s64, 2')
    A('s_add_u32 s12, s12, s6')
    A('s_lshl_b32 s12, s12, 11')
    A('s_add_u32 s12, s12, %d' % L.HF)
    A('s_mov_b32 s13, %d' % L.HF_SEG)
    A('s_mov_b32 s14, %d' % (L.CNT + L.C_H * 128))
    engine(A, 'gu')
    A('s_mul_i32 s8, s7, 9363')
    A('s_lshr_b32 s8, s8, 16')
    A('s_mul_i32 s64, s8, 7')
    A('s_sub_u32 s64, s7, s64')
    A('s_mov_b32 s9, 8')
    srd(A, SRD_A, S_WD, 1792 * 896)
    A('v_lshrrev_b32 v5, 3, v0')
    A('v_mul_u32_u24 v5, 896, v5')
    A('v_and_b32 v6, 7, v0')
    A('v_lshl_add_u32 v5, v6, 4, v5')
    A('v_lshrrev_b32 v6, 2, v3')
    A('v_lshl_add_u32 v6, v4, 2, v6')
    A('v_lshlrev_b32 v6, 7, v6')
    A('v_and_b32 v7, 3, v3')
    A('v_lshl_add_u32 v6, v7, 3, v6')
    A('s_mul_i32 s65, s6, 28672')
    A('v_add_u32 v6, s65, v6')
    A('s_mul_i32 s65, s6, %d' % (448 * 896))
    A('s_lshl_b32 s66, s64, 7')
    A('s_add_u32 s65, s65, s66')
    for ph in range(2):
        A('s_mul_i32 s66, s6, 28672')
        for i in range(28):
            A('s_mov_b32 m0, s66')
            A('buffer_load_dwordx4 v5, %s, s65 offen lds' % SA)
            A('s_add_u32 s65, s65, %d' % (8 * 896))
            A('s_add_u32 s66, s66, 1024')
        A('s_waitcnt vmcnt(0)')
        for tl in range(4):
            for pil in range(7):
                for half in range(2):
                    A('ds_read_b64_tr_b16 %s, v6 offset:%d' % (a((tl * 14 + ph * 7 + pil) * 4 + 2 * half, 2), pil * 4096 + half * 2048 + tl * 32))
        A('s_waitcnt lgkmcnt(0)')
    A('s_barrier')
    A('s_lshl_b32 s65, s6, 13')
    A('v_add_u32 v23, s65, v1')
    A('s_lshl_b32 s65, s6, 11')
    A('v_add_u32 v24, s65, v1')
    A('v_mul_u32_u24 v25, 896, v3')
    A('v_lshl_add_u32 v25, v4, 3, v25')
    A('s_lshr_b32 s65, s6, 1')
    A('s_mul_i32 s65, s65, %d' % (16 * 896))
    A('s_and_b32 s66, s6, 1')
    A('s_lshl_b32 s66, s66, 6')
    A('s_add_u32 s65, s65, s66')
    A('v_add_u32 v25, s65, v25')
    A('s_mul_i32 s10, s6, %d' % (28 * 1024))
    A('s_add_u32 s10, s10, %d' % L.HF)
    A('s_mov_b32 s11, %d' % L.HF_SEG)
    A('s_lshl_b32 s12, s64, 7')
    A('s_add_u32 s12, s12, %d' % L.GB)
    A('s_mov_b32 s13, %d' % (32 * 896))
    A('s_mov_b32 s14, %d' % (L.CNT + L.C_G * 128))
    A('s_mov_b32 s15, %d' % (L.CNT + L.C_H * 128))
    engine(A, 'down')
    A('s_endpgm')

def role_f1(A):
    NEG = f2u(-1e9 * LOG2E)
    A('s_and_b32 s8, s7, 3')
    A('s_lshr_b32 s64, s7, 2')
    A('v_and_b32 v6, 13, v3')
    A('v_lshlrev_b32 v6, 4, v6')
    A('v_lshrrev_b32 v7, 1, v4')
    A('v_lshl_add_u32 v6, v7, 8, v6')
    A('v_and_b32 v7, 1, v4')
    A('v_lshl_add_u32 v6, v7, 3, v6')
    for q in range(7):
        A('v_add_u32 v%d, %d, v1' % (16 + q, q * 4096))
    for q in range(2):
        A('v_add_u32 v%d, %d, v6' % (24 + q, q * 4096))
    for q in range(4):
        A('v_lshl_add_u32 v7, v4, 2, %d' % q)
        A('v_cmp_le_u32 s[%d:%d], v7, v3' % (72 + 2 * q, 73 + 2 * q))
    A('v_mov_b32 v8, 0x%x' % NEG)
    A('s_and_b32 s65, s6, 1')
    A('s_lshl_b32 s65, s65, 2')
    A('s_lshr_b32 s66, s6, 1')
    A('s_lshl_b32 s66, s66, 11')
    A('s_add_u32 s65, s65, s66')
    A('v_add_u32 v9, s65, v1')
    A('v_add_u32 v10, 4096, v9')
    A('s_lshl_b32 s65, s6, 2')
    A('s_add_u32 s65, s65, 8192')
    A('v_add_u32 v11, s65, v1')
    TXF = lambda pi, tk: a((pi * 2 + tk) * 4, 4)
    XNF = lambda b, pi: a(112 + (b * 14 + pi) * 4, 4)
    MF = lambda pi: v(128 + pi * 4, 4)
    S = lambda kt, tk: 64 + (kt * 2 + tk) * 4
    A.label('f1_loop')
    A('s_lshl_b32 s69, s64, 7')
    A('s_add_u32 s69, s69, %d' % (L.CNT + L.C_T * 128))
    A('s_mul_i32 s66, s64, %d' % (28 * 1024))
    A('s_add_u32 s66, s66, %d' % L.XN)
    for k in range(28):
        A('buffer_load_dwordx4 %s, v%d, %s, s66 offen offset:%d' % (XNF(k // 14, k % 14), 16 + k // 4, WS, (k % 4) * 1024))
    wait_counter(A, 69, 28, 5)
    A('s_lshl_b32 s65, s8, 2')
    A('s_add_u32 s65, s65, s6')
    A('s_mul_i32 s65, s65, %d' % (28 * 1024))
    A('s_mul_i32 s66, s64, %d' % L.TX_SEG)
    A('s_add_u32 s65, s65, s66')
    A('s_add_u32 s65, s65, %d' % L.TX)
    for k in range(28):
        A('buffer_load_dwordx4 %s, v%d, %s, s65 offen offset:%d sc1' % (TXF(k // 2, k % 2), 16 + k // 4, WS, (k % 4) * 1024))
    for pi in range(14):
        A('s_waitcnt vmcnt(%d)' % (26 - 2 * pi))
        for (b, tk) in ((0, 0), (0, 1), (1, 1)):
            d = v(S(b, tk), 4)
            A('v_mfma_f32_16x16x32_bf16 %s, %s, %s, %s' % (d, XNF(b, pi), TXF(pi, tk), '0' if pi == 0 else d))
    A('s_lshl_b32 s69, s64, 7')
    A('s_add_u32 s69, s69, %d' % (L.CNT + L.C_M * 128))
    wait_counter(A, 69, 1, 6, sleep=1)
    A('s_lshl_b32 s66, s64, 13')
    A('s_add_u32 s66, s66, %d' % L.MEMX)
    for pi in range(14):
        A('buffer_load_dwordx2 %s, v%d, %s, s66 offen offset:%d sc1' % (v(128 + pi * 4, 2), 24 + pi // 8, WS, (pi % 8) * 512))
        A('buffer_load_dwordx2 %s, v%d, %s, s66 offen offset:%d sc1' % (v(128 + pi * 4 + 2, 2), 24 + pi // 8, WS, (pi % 8) * 512 + 32))
    for (b, tk) in ((0, 0), (1, 1)):
        for q in range(4):
            A('v_cndmask_b32 v%d, v8, v%d, s[%d:%d]' % (S(b, tk) + q, S(b, tk) + q, 72 + 2 * q, 73 + 2 * q))
    for pi in range(14):
        A('s_waitcnt vmcnt(%d)' % (26 - 2 * pi))
        A('v_swap_b32 v%d, v%d' % (128 + pi * 4 + 1, 128 + pi * 4 + 2))
        for tk in range(2):
            d = v(S(2, tk), 4)
            A('v_mfma_f32_16x16x32_bf16 %s, %s, %s, %s' % (d, MF(pi), TXF(pi, tk), '0' if pi == 0 else d))
    A('s_mul_i32 s66, s64, %d' % L.PT_SEG)
    A('s_mul_i32 s65, s8, %d' % (10 * 1024))
    A('s_add_u32 s66, s66, s65')
    A('s_add_u32 s66, s66, %d' % L.PT)
    for tk in range(2):
        vals = [S(0, tk) + q for q in range(4)] + ([S(1, 1) + q for q in range(4)] if tk else []) + [S(2, tk), S(2, tk) + 1]
        M, T, SUM = 96, 97, 98
        A('v_max3_f32 v%d, v%d, v%d, v%d' % (M, vals[0], vals[1], vals[2]))
        i = 3
        while i < len(vals):
            if i + 1 < len(vals):
                A('v_max3_f32 v%d, v%d, v%d, v%d' % (M, M, vals[i], vals[i + 1])); i += 2
            else:
                A('v_max_f32 v%d, v%d, v%d' % (M, M, vals[i])); i += 1
        xsum4(A, M, T, 'v_max_f32')
        for x in vals:
            A('v_sub_f32 v%d, v%d, v%d' % (x, x, M))
        for x in vals:
            A('v_exp_f32 v%d, v%d' % (x, x))
        A('v_add_f32 v%d, v%d, v%d' % (SUM, vals[0], vals[1]))
        for x in vals[2:]:
            A('v_add_f32 v%d, v%d, v%d' % (SUM, SUM, x))
        xsum4(A, SUM, T)
        A('v_rcp_f32 v%d, v%d' % (SUM, SUM))
        for x in vals:
            A('v_mul_f32 v%d, v%d, v%d' % (x, x, SUM))
        O = 100 + tk * 8
        n = 0
        for b in range(tk + 1):
            for p in range(2):
                A('v_cvt_pk_bf16_f32 v%d, v%d, v%d' % (O + n, S(b, tk) + 2 * p, S(b, tk) + 2 * p + 1))
                A('buffer_store_dword v%d, v%d, %s, s66 offen offset:%d sc1' % (O + n, 9 + b, WS, tk * 1024 + p * 8))
                n += 1
        A('v_cvt_pk_bf16_f32 v%d, v%d, v%d' % (O + n, S(2, tk), S(2, tk) + 1))
        A('buffer_store_dword v%d, v11, %s, s66 offen offset:%d sc1' % (O + n, WS, tk * 1024))
    A('s_lshl_b32 s69, s64, 7')
    A('s_add_u32 s69, s69, %d' % (L.CNT + L.C_P * 128))
    A('s_waitcnt vmcnt(0)')
    A('s_barrier')
    signal(A, 69)
    A('s_add_u32 s64, s64, 4')
    A('s_cmp_lt_u32 s64, 64')
    A('s_cbranch_scc1 f1_loop')
    A('s_endpgm')

def role_f2(A, nf2):
    srd(A, SRD_A, S_X, 2048 * 896)
    srd(A, SRD_B, S_OUT, 2048 * 896)
    for q in range(10):
        A('v_add_u32 v%d, %d, v1' % (16 + q, q * 4096))
    A('v_mul_u32_u24 v6, 896, v3')
    A('v_lshl_add_u32 v6, v4, 3, v6')
    A('s_lshl_b32 s65, s6, 5')
    A('v_add_u32 v6, s65, v6')
    A('v_add_u32 v7, %d, v6' % (16 * 896))
    VXF = lambda w, j: a((w * 4 + j) * 4, 4)
    UXF = lambda w: a(64 + w * 4, 4)
    PF = lambda w, f, tk: v(64 + ((w * 5 + f) * 2 + tk) * 4, 4)
    A('s_mov_b32 s63, s7')
    A.label('f2_loop')
    A('s_mul_i32 s64, s63, 9363')
    A('s_lshr_b32 s64, s64, 16')
    A('s_mul_i32 s65, s64, 7')
    A('s_sub_u32 s8, s63, s65')
    A('s_lshl_b32 s9, s8, 2')
    A('s_add_u32 s9, s9, s6')
    A('s_lshl_b32 s68, s64, 7')
    A('s_add_u32 s69, s68, %d' % (L.CNT + L.C_V * 128))
    wait_counter(A, 69, 28, 7)
    A('s_mul_i32 s65, s64, %d' % L.VX_SEG)
    A('s_lshl_b32 s66, s9, 14')
    A('s_add_u32 s65, s65, s66')
    A('s_add_u32 s65, s65, %d' % L.VX)
    for k in range(16):
        A('buffer_load_dwordx4 %s, v%d, %s, s65 offen offset:%d sc1' % (VXF(k // 4, k % 4), 16 + k // 4, WS, (k % 4) * 1024))
    A('s_mul_i32 s70, s64, %d' % (32 * 896))
    A('s_lshl_b32 s66, s8, 7')
    A('s_add_u32 s70, s70, s66')
    A('buffer_load_dwordx2 v[40:41], v6, %s, s70 offen' % SA)
    A('buffer_load_dwordx2 v[42:43], v7, %s, s70 offen' % SA)
    A('s_add_u32 s69, s68, %d' % (L.CNT + L.C_G * 128))
    wait_counter(A, 69, 7, 8)
    A('s_add_u32 s71, s70, %d' % L.GB)
    A('buffer_load_dwordx2 v[44:45], v6, %s, s71 offen sc1' % WS)
    A('buffer_load_dwordx2 v[46:47], v7, %s, s71 offen sc1' % WS)
    A('s_add_u32 s69, s68, %d' % (L.CNT + L.C_U * 128))
    wait_counter(A, 69, 28, 9)
    A('s_mul_i32 s65, s64, %d' % L.UX_SEG)
    A('s_lshl_b32 s66, s9, 12')
    A('s_add_u32 s65, s65, s66')
    A('s_add_u32 s65, s65, %d' % L.UX)
    for w in range(4):
        A('buffer_load_dwordx4 %s, v1, %s, s65 offen offset:%d sc1' % (UXF(w), WS, w * 1024))
    A('s_add_u32 s69, s68, %d' % (L.CNT + L.C_P * 128))
    wait_counter(A, 69, 4, 10, sleep=1)
    A('s_mul_i32 s65, s64, %d' % L.PT_SEG)
    A('s_add_u32 s65, s65, %d' % L.PT)
    order = []
    for w in range(4):
        for f in range(5):
            for tk in range(2):
                if tk == 0 and f in (2, 3):
                    continue
                k = (w * 5 + f) * 2 + tk
                A('buffer_load_dwordx4 %s, v%d, %s, s65 offen offset:%d sc1' % (PF(w, f, tk), 16 + k // 4, WS, (k % 4) * 1024))
                order.append((w, f, tk))
    first = [True, True]
    for n, (w, f, tk) in enumerate(order):
        A('s_waitcnt vmcnt(%d)' % (len(order) - 1 - n))
        d = v(32 + 4 * tk, 4)
        A('v_mfma_f32_16x16x32_bf16 %s, %s, %s, %s' % (d, UXF(w) if f == 4 else VXF(w, f), PF(w, f, tk), '0' if first[tk] else d))
        first[tk] = False
    for tk in range(2):
        Dd = 32 + 4 * tk
        for p in range(2):
            x, g = 40 + 2 * tk + p, 44 + 2 * tk + p
            rnd_pair(A, Dd + 2 * p, Dd + 2 * p + 1, 48)
            A('v_lshlrev_b32 v49, 16, v%d' % g)
            A('v_and_b32 v50, 0xffff0000, v%d' % g)
            A('v_mul_f32 v%d, v%d, v49' % (Dd + 2 * p, Dd + 2 * p))
            A('v_mul_f32 v%d, v%d, v50' % (Dd + 2 * p + 1, Dd + 2 * p + 1))
            rnd_pair(A, Dd + 2 * p, Dd + 2 * p + 1, 48)
            A('v_lshlrev_b32 v49, 16, v%d' % x)
            A('v_and_b32 v50, 0xffff0000, v%d' % x)
            A('v_add_f32 v%d, v%d, v49' % (Dd + 2 * p, Dd + 2 * p))
            A('v_add_f32 v%d, v%d, v50' % (Dd + 2 * p + 1, Dd + 2 * p + 1))
            A('v_cvt_pk_bf16_f32 v%d, v%d, v%d' % (52 + 2 * tk + p, Dd + 2 * p, Dd + 2 * p + 1))
        A('buffer_store_dwordx2 %s, v%d, %s, s70 offen' % (v(52 + 2 * tk, 2), 6 + tk, SB))
    A('s_add_u32 s63, s63, %d' % nf2)
    A('s_cmp_lt_u32 s63, 448')
    A('s_cbranch_scc1 f2_loop')
    A('s_endpgm')
```

```python
import sys, os
sys.path.insert(0, os.path.dirname(__file__))
from common import *
import k1 as K1

NAME = 'recurrent_scan__memory_aug_recurrent_mem_tr__swiglu_ffn__prompt'
REF = 'cdna_kernels/%s.s.ref' % NAME

def header():
    lines = []
    for l in open(REF).read().split('\n'):
        if not l.startswith(';'):
            break
        if '@launch' in l or 'Override launch' in l or 'grid=ceil' in l:
            continue
        lines.append(l)
    return '\n'.join(lines) + '\n'

def build(launches, emit, descs):
    A = Asm()
    emit(A)
    txt = header()
    for (k, g, b, lds) in launches:
        txt += '; @launch kernel=%s grid=(%d,1,1) block=(%d,1,1) lds=%d\n' % (k, g, b, lds)
    txt += '.amdgcn_target "amdgcn-amd-amdhsa--gfx950"\n.text\n'
    txt += A.text()
    for d in descs:
        txt += kdesc(*d)
    return txt

if __name__ == '__main__':
    mode = sys.argv[1]
    out = sys.argv[2]
    if mode == 'k1':
        txt = build([('prep_kernel', 244, 448, 36864)], lambda A: K1.k1(A, 'prep_kernel'), [('prep_kernel', 256, 192)])
    else:
        import mega
        txt = mega.build_all(mode, build)
    open(out, 'w').write(txt)
    print('wrote', out, len(txt), 'bytes')
```
